```python
import torch

def _softmax(x, axis=-1):
    return torch.softmax(x, dim=axis)
def _gelu(x):
    return torch.nn.functional.gelu(x, approximate="tanh")
def _silu(x):
    return torch.nn.functional.silu(x)
def _sigmoid(x):
    return torch.sigmoid(x)
def _layernorm(x, axis=-1, eps=1e-5):
    m = x.mean(dim=axis, keepdim=True)
    v = x.var(dim=axis, keepdim=True, unbiased=False)
    return (x - m) / torch.sqrt(v + eps)
def _scatter_add(tgt, idx, src, axis=0):
    return tgt.clone().index_add_(axis, idx, src)
def _segment_sum(src, seg, n):
    out = torch.zeros((n,) + src.shape[1:], dtype=src.dtype)
    return out.index_add_(0, seg, src)
def _pad(x, pw):
    flat = tuple(v for pair in reversed(pw) for v in pair)
    return torch.nn.functional.pad(x, flat)

kernel_name = 'parallel_sum__softmax_full_mha__mixer_token_mlp__prompt'

def setup_inputs():

    _w = (lambda a: (lambda t: t.to(torch.bfloat16) if t.is_floating_point() else t)(torch.as_tensor(a)))
    def _A_setup():
        B, S, D = 1, 2048, 448
        return {
            "x": _w((lambda *s: torch.randn(*s, dtype=torch.bfloat16) * 0.05)(B, S, D)),
            "wqkv": _w((lambda *s: torch.randn(*s, dtype=torch.bfloat16) * 0.05)(D, 3 * D)),
            "wo": _w((lambda *s: torch.randn(*s, dtype=torch.bfloat16) * 0.05)(D, D)),
        }
    _A_in = _A_setup()

    def _B_setup():
        B, S, D, F = 1, 2048, 448, 1792
        return {
            "x": _w((lambda *s: torch.randn(*s, dtype=torch.bfloat16) * 0.05)(B, S, D)),
            "w1": _w((lambda *s: torch.randn(*s, dtype=torch.bfloat16) * 0.8)(S, F) * (S ** -0.5)),
            "b1": _w((lambda *s: torch.randn(*s, dtype=torch.bfloat16) * 12.8)(F) * 0.02),
            "w2": _w((lambda *s: torch.randn(*s, dtype=torch.bfloat16) * 0.2)(F, S) * (F ** -0.5)),
            "b2": _w((lambda *s: torch.randn(*s, dtype=torch.bfloat16) * 1.6)(S) * 0.02),
        }
    _B_in = _B_setup()

    return {
        "A_x": _A_in["x"],
        "A_wqkv": _A_in["wqkv"],
        "A_wo": _A_in["wo"],
        "B_x": _B_in["x"],
        "B_w1": _B_in["w1"],
        "B_b1": _B_in["b1"],
        "B_w2": _B_in["w2"],
        "B_b2": _B_in["b2"],
    }

def reference(A_x, A_wqkv, A_wo, B_x, B_w1, B_b1, B_w2, B_b2):
    def _A_ref(x, wqkv, wo):
        B, S, D = x.shape
        H = 16; Dh = D // H
        qkv = (lambda x, *d: x.permute(*d))((x @ wqkv).reshape(B, S, 3, H, Dh), 2, 0, 3, 1, 4)
        q, k, v = qkv[0], qkv[1], qkv[2]
        scale = Dh ** -0.5
        scores = torch.einsum("bhqd,bhkd->bhqk", q, k) * scale
        p = _softmax(scores, axis=-1)
        o = torch.einsum("bhqk,bhkd->bhqd", p, v)
        return (lambda x, *d: x.permute(*d))(o, 0, 2, 1, 3).reshape(B, S, D) @ wo

    def _B_ref(x, w1, b1, w2, b2):
        B, S, D = x.shape
        h = _layernorm(x, axis=-1)
        u = torch.einsum("bsd,sf->bdf", h, w1) + b1
        u = _gelu(u)
        y = torch.einsum("bdf,fs->bds", u, w2) + b2
        return (lambda x, *d: x.permute(*d))(y, 0, 2, 1)

    x = A_x
    xn = _layernorm(x, axis=-1)
    return x + _A_ref(xn, A_wqkv, A_wo) + _B_ref(xn, B_w1, B_b1, B_w2, B_b2)
```

```python
import re

TRANS = ("v_exp_f32", "v_log_f32", "v_rcp_f32", "v_rsq_f32", "v_sqrt_f32", "v_sin_f32", "v_cos_f32")
NO_DST_S = ("s_cmp", "s_cbranch", "s_branch", "s_waitcnt", "s_barrier", "s_nop", "s_sleep", "s_setprio",
            "s_endpgm", "s_bitcmp", "s_setpc", "s_setreg", "s_sendmsg")


def regs_of(op):
    op = op.strip()
    op = op.lstrip("-")
    m = re.fullmatch(r"abs\((.*)\)", op) or re.fullmatch(r"\|(.*)\|", op)
    if m:
        op = m.group(1)
    m = re.fullmatch(r"([vas])(\d+)", op)
    if m:
        return {(m.group(1), int(m.group(2)))}
    m = re.fullmatch(r"([vas])\[(\d+):(\d+)\]", op)
    if m:
        return {(m.group(1), i) for i in range(int(m.group(2)), int(m.group(3)) + 1)}
    if op in ("vcc", "vcc_lo", "vcc_hi"):
        return {("x", "vcc")}
    if op in ("exec", "exec_lo", "exec_hi"):
        return {("x", "exec")}
    if op == "m0":
        return {("x", "m0")}
    return set()


class Ins:
    def __init__(self, text):
        self.text = text
        t = text.split(";")[0].strip()
        parts = t.split(None, 1)
        self.mn = parts[0]
        rest = parts[1] if len(parts) > 1 else ""
        ops = [o.strip() for o in rest.split(",")] if rest else []
        mods = ""
        if ops:
            last = ops[-1].split(None, 1)
            ops[-1] = last[0]
            mods = last[1] if len(last) > 1 else ""
        self.ops, self.mods = ops, mods
        mn = self.mn
        base = re.sub(r"_(e32|e64|dpp|sdwa)$", "", mn)
        self.base = base
        self.mfma = mn.startswith("v_mfma")
        self.valu = mn.startswith("v_") and not self.mfma
        self.trans = base in TRANS
        self.dot = base.startswith("v_dot")
        self.vmem = mn.startswith(("buffer_", "global_"))
        self.ds = mn.startswith("ds_")
        self.salu = mn.startswith("s_")
        self.dpp = self.valu and bool(re.search(r"row_|quad_perm|wave_", mods))
        self.perm = base.startswith("v_permlane")
        self.rdlane = base in ("v_readfirstlane_b32", "v_readlane_b32")
        self.ldsdma = self.vmem and (re.search(r"\blds\b", mods) is not None or "load_lds" in mn)
        self.passes = 0
        R = [regs_of(o) for o in ops]
        w, r = set(), set()
        self.A = self.B = self.C = set()
        if self.mfma:
            self.passes = 8 if "32x32x16" in mn else 4 if "16x16x32" in mn else None
            assert self.passes, mn
            w = R[0]
            self.A, self.B, self.C = R[1], R[2], R[3]
            r = R[1] | R[2] | R[3]
        elif self.valu:
            if base == "v_nop":
                pass
            elif self.perm:
                w = R[0] | R[1]
                r = R[0] | R[1]
            else:
                w = set(R[0])
                srcs = R[1:]
                if re.match(r"v_(add|sub|subrev|addc|subb)_co", base):
                    w |= R[1]
                    srcs = R[2:]
                for x in srcs:
                    r |= x
                if base.startswith(("v_fmac", "v_dot2c", "v_mac", "v_writelane")) or self.dpp:
                    r |= R[0]
        elif self.vmem:
            if self.ldsdma:
                for x in R:
                    r |= x
                r.add(("x", "m0"))
            elif "_load" in mn:
                w = R[0]
                for x in R[1:]:
                    r |= x
            else:
                for x in R:
                    r |= x
                if "atomic" in mn and "sc0" in mods:
                    w = R[0]
        elif self.ds:
            if mn.startswith(("ds_read", "ds_bpermute", "ds_permute", "ds_swizzle")) or "_rtn" in mn:
                w = R[0]
                for x in R[1:]:
                    r |= x
            else:
                for x in R:
                    r |= x
        elif self.salu:
            if mn.startswith(NO_DST_S):
                for x in R:
                    r |= x
            else:
                w = set(R[0]) if R else set()
                for x in R[1:]:
                    r |= x
                if "saveexec" in mn:
                    w.add(("x", "exec"))
        self.w, self.r = w, r
        self.states = 1
        if mn == "s_nop":
            self.states = int(ops[0], 0) + 1
        self.widestore = self.vmem and ("store_dwordx4" in mn or "store_dwordx3" in mn)
        self.sdata = R[0] if (self.widestore and mn.startswith("buffer_")) else (R[1] if self.widestore else set())


def vec(s):
    return {x for x in s if x[0] in "va"}


def sca(s):
    return {x for x in s if x[0] == "s" or x == ("x", "vcc")}


def need(p, c):
    n = 0
    if p.valu:
        pv, ps = vec(p.w), sca(p.w)
        if c.mfma and pv & c.r:
            n = max(n, 2)
        if c.perm and pv & c.r:
            n = max(n, 2)
        if c.dpp and pv & c.r:
            n = max(n, 2)
        if c.rdlane and pv & c.r:
            n = max(n, 1)
        if p.trans and (c.valu or c.vmem or c.ds) and not c.trans and pv & c.r:
            n = max(n, 1)
        if p.dot and pv & (c.r | c.w):
            if c.base == p.base:
                srcab = regs_of(c.ops[1]) | regs_of(c.ops[2])
                if pv & srcab:
                    n = max(n, 3)
            else:
                n = max(n, 3)
        if ps:
            if c.valu and ps & c.r:
                n = max(n, 4 if c.base in ("v_readlane_b32", "v_writelane_b32") else 2)
            if c.vmem and ps & c.r:
                n = max(n, 5)
        assert ("x", "exec") not in p.w, p.text
    if p.mfma:
        big = p.passes == 8
        if c.mfma:
            if p.w & (c.A | c.B):
                n = max(n, 12 if big else 8)
            if p.w & c.C and not (p.w == c.C and p.passes == c.passes):
                n = max(n, 10 if big else 6)
            if p.w & c.w and not (p.w == c.C and p.passes == c.passes):
                n = max(n, 10 if big else 6)
        elif (c.valu or c.vmem or c.ds) and p.w & (c.r | c.w):
            n = max(n, 12 if big else 8)
        if c.valu and p.C & c.w:
            n = max(n, 7 if big else 3)
    if p.salu and ("x", "m0") in p.w and c.ldsdma:
        n = max(n, 1)
    if p.widestore and vec(c.w) & p.sdata:
        n = max(n, 2 if c.valu else 1)
    return n


class Asm:
    def __init__(self):
        self.lines = []

    def __call__(self, text):
        for ln in text.split("\n"):
            ln = ln.strip()
            if ln:
                self.lines.append(ln)

    def label(self, name):
        self.lines.append(name + ":")

    @staticmethod
    def is_ins(ln):
        return not (ln.endswith(":") or ln.startswith((".", ";")))

    def finish(self, report=False):
        out, hist, added = [], [], 0
        for ln in self.lines:
            if not self.is_ins(ln):
                out.append(ln)
                continue
            c = Ins(ln)
            dist, req = 0, 0
            for p in reversed(hist):
                if dist >= 20:
                    break
                req = max(req, need(p, c) - dist)
                dist += p.states
            if req > 0:
                nop = Ins(f"s_nop {req - 1}")
                out.append(nop.text)
                hist.append(nop)
                added += req
                if report:
                    print(f"  hazard pad {req} before: {ln}")
            out.append(ln)
            hist.append(c)
            if c.mn in ("s_endpgm", "s_branch", "s_setpc_b64"):
                hist = []
        self._check_edges(out)
        return out

    def _check_edges(self, out):
        labels = {ln[:-1]: i for i, ln in enumerate(out) if ln.endswith(":")}
        ins = [Ins(ln) if self.is_ins(ln) else None for ln in out]
        for i, b in enumerate(ins):
            if b is None or not b.mn.startswith(("s_cbranch", "s_branch")):
                continue
            j = labels[b.ops[0]]
            before = []
            k = i
            while k >= 0 and sum(x.states for x in before) < 24:
                if ins[k] is not None:
                    if k != i and ins[k].mn in ("s_endpgm", "s_branch", "s_setpc_b64"):
                        break
                    before.append(ins[k])
                k -= 1
            after_dist = 0
            k = j
            while k < len(out) and after_dist < 20:
                c = ins[k]
                if c is not None:
                    d = after_dist
                    for p in before:
                        assert need(p, c) <= d, f"hazard across branch {b.text}: {p.text} -> {c.text}"
                        d += p.states
                    after_dist += c.states
                    if c.mn in ("s_endpgm", "s_branch", "s_setpc_b64"):
                        break
                k += 1
```

```python
import struct

S, D, H, DH, F = 2048, 448, 16, 28, 1792
QF, KVF, HT, UF, OF, FLAGS = 0, 2 << 20, 6 << 20, 8 << 20, 10 << 20, 12 << 20
WS_BYTES = 16 << 20
OOB = 0x40000000
P_X, P_WQKV, P_WO, P_W1, P_B1, P_W2, P_B2, P_OUT, P_DBG, P_WS = 4, 6, 8, 12, 14, 16, 18, 20, 22, 24
SC = "sc1"


def f32(x):
    return "0x%08x" % struct.unpack("<I", struct.pack("<f", x))[0]


EPS = f32(1e-5)
INV_D = f32(1.0 / D)
QSCALE = DH ** -0.5 * 1.4426950408889634


def vr(b, n):
    return f"v[{b}:{b + n - 1}]"


def sr(b, n):
    return f"s[{b}:{b + n - 1}]"


def load_args(a):
    a("""s_load_dwordx16 s[4:19], s[0:1], 0
         s_load_dwordx4 s[20:23], s[0:1], 64
         s_load_dwordx2 s[24:25], s[0:1], 80""")


def srd(a, d, p, nbytes):
    a(f"""s_mov_b32 s{d}, s{p}
          s_mov_b32 s{d + 1}, s{p + 1}
          s_mov_b32 s{d + 2}, {nbytes}
          s_mov_b32 s{d + 3}, 0x20000""")


def lane_wave(a, vlane=1, swave=26):
    a(f"""v_lshrrev_b32 v{vlane}, 6, v0
          s_nop 0
          v_readfirstlane_b32 s{swave}, v{vlane}
          v_and_b32 v{vlane}, 63, v0""")


MF = "v_mfma_f32_32x32x16_bf16"


def qkv(a, idreg, pfx, done):
    CS, RS, XR, WR = 0, 512, 2048, 34816
    ACC, XF, WF = 64, 2, 18
    VX, VW, XA, WA = 42, 46, 49, 53
    SUM, SSQ, CSV, ONES, T = 57, 58, 59, 62, 63
    sW, sRB, sJ, sXO, sWO, sXM, sWM = 26, 27, 48, 49, 50, 51, 52
    lane_wave(a)
    a(f"""s_and_b32 s53, s{idreg}, 7
          s_lshr_b32 s54, s{idreg}, 3
          s_lshr_b32 s55, s53, 1
          s_lshl_b32 s55, s55, 2
          s_and_b32 s56, s54, 3
          s_add_u32 s{sRB}, s55, s56
          s_and_b32 s53, s53, 1
          s_lshl_b32 s53, s53, 3
          s_lshr_b32 s54, s54, 2
          s_add_u32 s{sJ}, s53, s54
          s_lshl_b32 s53, s{sRB}, 2
          s_add_u32 s57, s53, s{sW}
          s_mul_i32 s{sXO}, s57, {32 * 896}
          s_mul_i32 s{sWO}, s{sW}, {16 * 2688}
          s_mul_i32 s53, s{sJ}, 168
          s_add_u32 s{sWO}, s{sWO}, s53
          s_lshl_b32 s{sXM}, s{sW}, 12
          s_add_u32 s{sXM}, s{sXM}, {XR}
          s_mul_i32 s{sWM}, s{sW}, 3072
          s_add_u32 s{sWM}, s{sWM}, {WR}""")
    a(f"""v_lshrrev_b32 v2, 3, v1
          v_and_b32 v3, 7, v1
          v_lshrrev_b32 v4, 1, v2
          v_xor_b32 v3, v3, v4
          v_lshlrev_b32 v3, 4, v3
          v_mul_u32_u24 v2, 896, v2
          v_add_u32 v{VX}, v2, v3
          v_xor_b32 v3, 64, v3
          v_add_u32 v2, v2, v3
          v_add_u32 v{VX + 1}, {7168 - 1024}, v2
          v_add_u32 v{VX + 2}, {2 * (7168 - 1024)}, v{VX}
          v_add_u32 v{VX + 3}, {3 * (7168 - 1024)}, v2""")
    for i in range(3):
        a(f"""v_add_u32 v2, {64 * i}, v1
              v_mul_u32_u24 v3, 43691, v2
              v_lshrrev_b32 v3, 19, v3
              v_mul_u32_u24 v4, 12, v3
              v_sub_u32 v4, v2, v4
              v_min_u32 v4, 10, v4
              v_mul_u32_u24 v3, 2688, v3
              v_lshl_add_u32 v3, v4, 4, v3
              v_subrev_u32 v{VW + i}, {1024 * i}, v3""")
    a("s_waitcnt lgkmcnt(0)")
    srd(a, 28, P_X, S * D * 2)
    srd(a, 32, P_WQKV, D * 3 * D * 2)
    srd(a, 36, P_WS, WS_BYTES)

    def dma_w(c):
        a(f"s_add_u32 m0, s{sWM}, {(c % 3) * 12288}")
        for i in range(3):
            a(f"buffer_load_dwordx4 v{VW + i}, s[32:35], s{sWO} offen offset:{1024 * i} lds")
        a(f"s_add_u32 s{sWO}, s{sWO}, {64 * 2688}")

    def dma_x(c):
        a(f"s_add_u32 m0, s{sXM}, {(c % 2) * 16384}")
        for i in range(4):
            a(f"buffer_load_dwordx4 v{VX + i}, s[28:31], s{sXO} offen offset:{1024 * i} lds")
        a(f"s_add_u32 s{sXO}, s{sXO}, 128")

    dma_w(0); dma_x(0); dma_w(1); dma_x(1)
    a(f"""v_and_b32 v2, 31, v1
          v_lshrrev_b32 v3, 5, v1
          v_bfe_u32 v4, v1, 1, 3
          v_xor_b32 v4, v4, v3
          v_lshlrev_b32 v4, 4, v4
          v_lshl_add_u32 v4, v2, 7, v4
          v_add_u32 v4, s{sXM}, v4
          v_bfe_u32 v5, v1, 2, 2
          v_lshl_add_u32 v5, v3, 3, v5
          v_mul_u32_u24 v5, 192, v5
          v_bfe_u32 v6, v1, 4, 1
          v_lshl_add_u32 v5, v6, 5, v5
          v_and_b32 v6, 3, v1
          v_lshl_add_u32 v5, v6, 3, v5
          v_add_u32 v5, {WR}, v5""")
    for kk in range(4):
        a(f"""s_add_u32 s53, s{sW}, {kk}
              s_and_b32 s53, s53, 3
              s_lshl_b32 s54, s53, 5
              s_mul_i32 s53, s53, {16 * 192}
              v_xor_b32 v{XA + kk}, s54, v4
              v_add_u32 v{WA + kk}, s53, v5""")
    a(f"""v_mov_b32 v{ONES}, 0x3f803f80
          v_mov_b32 v{SUM}, 0
          v_mov_b32 v{SSQ}, 0
          v_mov_b32 v{CSV}, 0
          v_mov_b32 v{CSV + 1}, 0
          v_mov_b32 v{CSV + 2}, 0
          v_lshlrev_b32 v2, 2, v1
          ds_write_b32 v2, v{SUM} offset:{CS}
          ds_write_b32 v2, v{SUM} offset:{CS + 256}""")
    a(f"""s_cmp_ge_u32 s{sJ}, 11
          s_cbranch_scc1 {pfx}_vvv
          s_cmp_eq_u32 s{sJ}, 10
          s_cbranch_scc1 {pfx}_nnv""")

    def wreads(c, kk):
        for i in range(3):
            for p in range(2):
                b = WF + 12 * (kk & 1) + 4 * i + 2 * p
                a(f"ds_read_b64_tr_b16 {vr(b, 2)}, v{WA + kk} offset:{(c % 3) * 12288 + 4 * p * 192 + 56 * i}")

    def variant(types):
        for c in range(7):
            a(f"s_waitcnt vmcnt({7 if c < 6 else 0})")
            a("s_barrier")
            if c + 2 < 7:
                dma_w(c + 2)
            for kk in range(4):
                a(f"ds_read_b128 {vr(XF + 4 * kk, 4)}, v{XA + kk} offset:{(c % 2) * 16384}")
            wreads(c, 0)
            a("s_waitcnt lgkmcnt(6)")
            if c + 2 < 7:
                dma_x(c + 2)
            for kk in range(4):
                if kk < 3:
                    wreads(c, kk + 1)
                a(f"s_waitcnt lgkmcnt({6 if kk < 3 else 0})")
                x = vr(XF + 4 * kk, 4)
                dots = []
                for r in range(4):
                    dots.append(f"v_dot2c_f32_bf16 v{SSQ}, v{XF + 4 * kk + r}, v{XF + 4 * kk + r}")
                    dots.append(f"v_dot2c_f32_bf16 v{SUM}, v{XF + 4 * kk + r}, v{ONES}")
                if kk == 0:
                    for r in range(4):
                        for i in range(3):
                            dots.append(f"v_dot2c_f32_bf16 v{CSV + i}, v{WF + 4 * i + r}, v{ONES}")
                per = (len(dots) + 2) // 3
                for i in range(3):
                    w = vr(WF + 12 * (kk & 1) + 4 * i, 4)
                    acc = vr(ACC + 16 * i, 16)
                    cin = "0" if (c == 0 and kk == 0) else acc
                    a(f"{MF} {acc}, {w}, {x}, {cin}" if types[i] == "N" else f"{MF} {acc}, {x}, {w}, {cin}")
                    for d in dots[i * per:(i + 1) * per]:
                        a(d)
        R, NMR, RQ, NQ = 2, 3, 4, 5
        a(f"""v_mov_b32 v6, v{SUM}
              v_mov_b32 v7, v{SSQ}
              v_mov_b32 v8, v{CSV}
              v_mov_b32 v9, v{CSV + 1}
              v_mov_b32 v10, v{CSV + 2}
              v_and_b32 v11, 31, v1
              v_permlane32_swap_b32 v6, v{SUM}
              v_permlane32_swap_b32 v7, v{SSQ}
              v_permlane32_swap_b32 v8, v{CSV}
              v_permlane32_swap_b32 v9, v{CSV + 1}
              v_permlane32_swap_b32 v10, v{CSV + 2}
              v_lshlrev_b32 v11, 2, v11
              v_add_f32 v8, v8, v{CSV}
              v_add_f32 v9, v9, v{CSV + 1}
              v_add_f32 v10, v10, v{CSV + 2}
              s_mov_b32 exec_hi, 0
              ds_add_f32 v11, v8 offset:{CS}
              ds_add_f32 v11, v9 offset:{CS + 128}
              ds_add_f32 v11, v10 offset:{CS + 256}
              s_mov_b64 exec, -1
              v_add_f32 v6, v6, v{SUM}
              v_add_f32 v7, v7, v{SSQ}
              v_mul_f32 v6, {INV_D}, v6
              v_mul_f32 v7, {INV_D}, v7
              v_fma_f32 v7, -v6, v6, v7
              v_max_f32 v7, 0, v7
              v_add_f32 v7, {EPS}, v7
              v_rsq_f32 v{R}, v7
              v_lshrrev_b32 v12, 5, v1
              v_mul_f32 v{NMR}, v6, v{R}
              v_sub_f32 v{NMR}, 0, v{NMR}""")
        if "V" in types:
            a(f"""s_lshl_b32 s53, s{sW}, 8
                  v_add_u32 v13, s53, v11
                  ds_write_b32 v13, v{R} offset:{RS}
                  ds_write_b32 v13, v{NMR} offset:{RS + 128}
                  v_lshl_add_u32 v13, v12, 4, s53""")
        a(f"""v_lshlrev_b32 v12, 4, v12
              v_lshlrev_b32 v14, 4, v1
              s_waitcnt lgkmcnt(0)
              s_barrier""")
        if "V" in types:
            for g in range(4):
                a(f"ds_read_b128 {vr(18 + 4 * g, 4)}, v13 offset:{RS + 32 * g}")
                a(f"ds_read_b128 {vr(42 + 4 * g, 4)}, v13 offset:{RS + 128 + 32 * g}")
        for i in range(3):
            acc = ACC + 16 * i
            a(f"""s_mul_i32 s53, s{sJ}, 3
                  s_add_u32 s53, s53, {i}
                  s_and_b32 s54, s53, 15
                  s_lshl_b32 s54, s54, 6
                  s_add_u32 s54, s54, s57
                  s_lshl_b32 s55, s54, 11
                  s_lshl_b32 s54, s54, 12
                  s_add_u32 s54, s54, {KVF + (2048 if types[i] == 'V' else 0)}
                  s_cmp_lt_u32 s53, 16
                  s_cselect_b32 s54, s55, s54""")
            if types[i] == "N":
                a(f"s_cselect_b32 s55, {f32(QSCALE)}, 1.0")
                for g in range(4):
                    a(f"ds_read_b128 {vr(112 + 4 * g, 4)}, v12 offset:{CS + 128 * i + 32 * g}")
                a(f"""v_mul_f32 v6, s55, v{R}
                      v_mul_f32 v7, s55, v{NMR}
                      v_mov_b32 v{RQ}, v6
                      v_mov_b32 v{NQ}, v7
                      s_mov_b32 exec_lo, 0
                      v_mov_b32 v{RQ}, 0
                      v_mov_b32 v{NQ}, 0
                      s_mov_b64 exec, -1
                      s_waitcnt lgkmcnt(0)""")
                for r in range(16):
                    rr, nn = (6, 7) if r < 12 else (RQ, NQ)
                    a(f"v_mul_f32 v{112 + r}, v{112 + r}, v{nn}")
                    a(f"v_fmac_f32 v{112 + r}, v{acc + r}, v{rr}")
                for r in range(8):
                    a(f"v_cvt_pk_bf16_f32 v{acc + r}, v{112 + 2 * r}, v{113 + 2 * r}")
            else:
                a(f"""ds_read_b32 v6, v11 offset:{CS + 128 * i}
                      s_waitcnt lgkmcnt(0)""")
                for r in range(16):
                    a(f"v_mul_f32 v{112 + r}, v6, v{42 + r}")
                    a(f"v_fmac_f32 v{112 + r}, v{acc + r}, v{18 + r}")
                for r in range(8):
                    a(f"v_cvt_pk_bf16_f32 v{acc + r}, v{112 + 2 * r}, v{113 + 2 * r}")
                a("s_mov_b32 exec_lo, 0x10000000\ns_mov_b32 exec_hi, 0x10000000")
                for r in range(8):
                    a(f"v_mov_b32 v{acc + r}, v{ONES}")
                a("s_mov_b64 exec, -1")
            a(f"buffer_store_dwordx4 {vr(acc, 4)}, v14, s[36:39], s54 offen {SC}")
            a(f"buffer_store_dwordx4 {vr(acc + 4, 4)}, v14, s[36:39], s54 offen offset:1024 {SC}")
        a(f"s_branch {done}")

    variant("NNN")
    a.label(f"{pfx}_nnv")
    variant("NNV")
    a.label(f"{pfx}_vvv")
    variant("VVV")


def wave_sum(a, regs, sdst):
    for m in ("row_shr:1", "row_shr:2", "row_shr:4", "row_shr:8"):
        for r in regs:
            a(f"v_add_f32_dpp v{r}, v{r}, v{r} {m} row_mask:0xf bank_mask:0xf bound_ctrl:1")
    for m in ("row_bcast:15 row_mask:0xa", "row_bcast:31 row_mask:0xc"):
        for r in regs:
            a(f"v_add_f32_dpp v{r}, v{r}, v{r} {m} bank_mask:0xf")
    for r, s in zip(regs, sdst):
        a(f"v_readlane_b32 s{s}, v{r}, 63")


def ln(a, idreg, pfx):
    sW = 26
    X, U, ST, ONES = 2, 10, 26, 30
    lane_wave(a)
    a(f"""s_lshl_b32 s53, s{idreg}, 2
          s_add_u32 s53, s53, s{sW}
          s_mul_i32 s53, s53, {2 * 896}
          v_lshlrev_b32 v31, 4, v1
          v_mov_b32 v{ONES}, 0x3f803f80
          s_waitcnt lgkmcnt(0)""")
    srd(a, 28, P_X, S * D * 2)
    srd(a, 36, P_WS, WS_BYTES)
    for r in range(4):
        a(f"v_mov_b32 v{ST + r}, 0")
    a("s_mov_b32 exec_hi, 0x00ffffff")
    a(f"buffer_load_dwordx4 {vr(X, 4)}, v31, s[28:31], s53 offen")
    a(f"buffer_load_dwordx4 {vr(X + 4, 4)}, v31, s[28:31], s53 offen offset:896")
    a(f"""s_mul_i32 s54, s{sW}, {2 * 960}
          v_add_u32 v32, s54, v31
          s_waitcnt vmcnt(0)""")
    for rnd in range(2):
        for r in range(4):
            for row in range(2):
                x = X + 4 * row + r
                a(f"v_dot2c_f32_bf16 v{ST + 2 * row}, v{x}, v{ONES}")
                a(f"v_dot2c_f32_bf16 v{ST + 2 * row + 1}, v{x}, v{x}")
        a("s_mov_b32 exec_hi, -1")
        wave_sum(a, [ST, ST + 1, ST + 2, ST + 3], [60, 61, 62, 63])
        for row in range(2):
            m, q = 33 + 2 * row, 34 + 2 * row
            a(f"""v_mov_b32 v{m}, {INV_D}
                  v_mul_f32 v{q}, s{61 + 2 * row}, v{m}
                  v_mul_f32 v{m}, s{60 + 2 * row}, v{m}
                  v_fma_f32 v{q}, -v{m}, v{m}, v{q}
                  v_max_f32 v{q}, 0, v{q}
                  v_add_f32 v{q}, {EPS}, v{q}
                  v_rsq_f32 v{q}, v{q}""")
        for r in range(4):
            a(f"v_mov_b32 v{ST + r}, 0")
        a("s_mov_b32 exec_hi, 0x00ffffff")
        for row in range(2):
            m, q = 33 + 2 * row, 34 + 2 * row
            for r in range(4):
                x, u = X + 4 * row + r, U + 8 * row + 2 * r
                a(f"""v_lshlrev_b32 v{u}, 16, v{x}
                      v_and_b32 v{u + 1}, 0xffff0000, v{x}
                      v_sub_f32 v{u}, v{u}, v{m}
                      v_sub_f32 v{u + 1}, v{u + 1}, v{m}
                      v_mul_f32 v{u}, v{u}, v{q}
                      v_mul_f32 v{u + 1}, v{u + 1}, v{q}
                      v_cvt_pk_bf16_f32 v{x}, v{u}, v{u + 1}""")
    a(f"""ds_write_b128 v32, {vr(X, 4)}
          ds_write_b128 v32, {vr(X + 4, 4)} offset:960
          s_mov_b32 exec_hi, -1
          v_bfe_u32 v10, v1, 2, 2
          v_mul_u32_u24 v10, 960, v10
          v_lshrrev_b32 v11, 4, v1
          v_lshl_add_u32 v10, v11, 5, v10
          v_and_b32 v11, 3, v1
          v_lshl_add_u32 v10, v11, 3, v10
          s_lshl_b32 s54, s{sW}, 7
          v_add_u32 v10, s54, v10
          s_mul_i32 s53, s{idreg}, 7168
          s_lshl_b32 s54, s{sW}, 10
          s_add_u32 s53, s53, s54
          s_add_u32 s53, s53, {HT}
          s_add_u32 s54, s53, 4096
          s_cmp_eq_u32 s{sW}, 3
          s_cselect_b32 s54, {OOB}, s54
          s_waitcnt lgkmcnt(0)
          s_barrier
          ds_read_b64_tr_b16 v[12:13], v10
          ds_read_b64_tr_b16 v[14:15], v10 offset:{4 * 960}
          ds_read_b64_tr_b16 v[16:17], v10 offset:512
          ds_read_b64_tr_b16 v[18:19], v10 offset:{4 * 960 + 512}
          s_waitcnt lgkmcnt(2)
          buffer_store_dwordx4 v[12:15], v31, s[36:39], s53 offen {SC}
          s_waitcnt lgkmcnt(0)
          buffer_store_dwordx4 v[16:19], v31, s[36:39], s54 offen {SC}""")


def att(a, idreg, pfx):
    SA, SB, P, O, NM, Q, KV = 2, 18, 34, 42, 58, 74, 82
    VL, VD, T = 114, 115, 116
    sW, sH, sKV, sM, sQ = 26, 27, 48, 49, 50
    NT = 64
    lane_wave(a)
    a(f"""s_and_b32 s53, s{idreg}, 7
          s_lshr_b32 s54, s{idreg}, 3
          s_lshl_b32 s53, s53, 1
          s_lshr_b32 s55, s54, 4
          s_add_u32 s{sH}, s53, s55
          s_and_b32 s54, s54, 15
          s_lshl_b32 s54, s54, 2
          s_add_u32 s57, s54, s{sW}
          s_lshl_b32 s53, s{sH}, 6
          s_add_u32 s53, s53, s57
          s_lshl_b32 s{sQ}, s53, 11
          s_lshl_b32 s{sKV}, s{sH}, 18
          s_add_u32 s{sKV}, s{sKV}, {KVF}
          s_mov_b32 s58, s{sKV}
          s_lshl_b32 s{sM}, s{sW}, 12
          v_lshlrev_b32 v{VL}, 4, v1
          v_add_u32 v{VD}, s{sM}, v{VL}
          s_waitcnt lgkmcnt(0)""")
    srd(a, 36, P_WS, WS_BYTES)
    a(f"buffer_load_dwordx4 {vr(Q, 4)}, v{VL}, s[36:39], s{sQ} offen {SC}")
    a(f"buffer_load_dwordx4 {vr(Q + 4, 4)}, v{VL}, s[36:39], s{sQ} offen offset:1024 {SC}")

    def dma(st):
        a(f"s_add_u32 m0, s{sM}, {(st % 4) * 16384}")
        for i in range(4):
            a(f"buffer_load_dwordx4 v{VD}, s[36:39], s{sKV} offen offset:{1024 * i} {SC} lds")
        a(f"s_add_u32 s{sKV}, s{sKV}, 16384")

    def off(t, part):
        return ((t // 4) % 4) * 16384 + (t % 4) * 4096 + part * 1024

    def rd(dst, t, part):
        return f"ds_read_b128 {vr(dst, 4)}, v{VL} offset:{off(t, part)}"

    dma(0); dma(1); dma(2)
    a("s_waitcnt vmcnt(4)\ns_barrier")
    dma(3)
    k1 = KV + 16
    a(rd(k1, 0, 0)); a(rd(k1 + 8, 0, 1))
    a(rd(KV, 1, 0)); a(rd(KV + 8, 1, 1)); a(rd(KV + 12, 0, 2))
    a(f"""s_waitcnt lgkmcnt(3)
          {MF} {vr(SA, 16)}, {vr(k1, 4)}, {vr(Q, 4)}, 0
          {MF} {vr(SA, 16)}, {vr(k1 + 8, 4)}, {vr(Q + 4, 4)}, {vr(SA, 16)}""")
    a(f"v_max3_f32 v{T}, v{SA}, v{SA + 1}, v{SA + 2}")
    for r in range(3, 15, 2):
        a(f"v_max3_f32 v{T}, v{T}, v{SA + r}, v{SA + r + 1}")
    a(f"""v_max_f32 v{T}, v{T}, v{SA + 15}
          v_mov_b32 v{T + 1}, v{T}
          v_permlane32_swap_b32 v{T}, v{T + 1}
          v_max_f32 v{T}, v{T}, v{T + 1}
          v_sub_f32 v{NM}, 0, v{T}""")
    for r in range(1, 16):
        a(f"v_mov_b32 v{NM + r}, v{NM}")
    for r in range(16):
        a(f"v_add_f32 v{SA + r}, v{SA + r}, v{NM}")
    a("s_waitcnt lgkmcnt(0)")
    for t in range(NT):
        s, n = (SA, SB) if t % 2 == 0 else (SB, SA)
        kv, kn = KV + 16 * (t % 2), KV + 16 * ((t + 1) % 2)
        if t % 4 == 0 and t > 0:
            st = t // 4
            a(f"s_waitcnt vmcnt({4 if st + 2 < 16 else 0})\ns_barrier")

        def e(i):
            a(f"v_exp_f32 v{s + i}, v{s + i}")

        def c(i):
            a(f"v_cvt_pk_bf16_f32 v{P + i}, v{s + 2 * i}, v{s + 2 * i + 1}")

        reads = []
        if t + 2 < NT:
            reads += [rd(kn, t + 2, 0), rd(kn + 8, t + 2, 1)]
        reads.append(rd(kn + 4, t, 3))
        if t + 1 < NT:
            reads.append(rd(kn + 12, t + 1, 2))
        if t + 1 < NT:
            a(f"{MF} {vr(n, 16)}, {vr(kv, 4)}, {vr(Q, 4)}, {vr(NM, 16)}")
        e(0); e(1)
        a(reads.pop(0))
        e(2); c(0); e(3)
        if reads:
            a(reads.pop(0))
        e(4); c(1)
        if t > 0:
            a(f"{MF} {vr(O, 16)}, {vr(kv + 4, 4)}, {vr(P + 4, 4)}, {vr(O, 16)}")
        e(5)
        if reads:
            a(reads.pop(0))
        e(6); c(2); e(7)
        if reads:
            a(reads.pop(0))
        e(8); c(3)
        if t + 1 < NT:
            a(f"{MF} {vr(n, 16)}, {vr(kv + 8, 4)}, {vr(Q + 4, 4)}, {vr(n, 16)}")
        e(9)
        if t % 4 == 0 and t > 0 and t // 4 + 3 < 16:
            dma(t // 4 + 3)
        e(10); c(4); e(11); e(12); c(5)
        a(f"{MF} {vr(O, 16)}, {vr(kv + 12, 4)}, {vr(P, 4)}, {'0' if t == 0 else vr(O, 16)}")
        e(13); e(14); c(6); e(15)
        a("s_waitcnt lgkmcnt(0)")
        c(7)
    kv = KV + 16 * (NT % 2)
    a(f"{MF} {vr(O, 16)}, {vr(kv + 4, 4)}, {vr(P + 4, 4)}, {vr(O, 16)}")
    a.label(f"{pfx}_fin")
    a(f"""s_lshl_b32 s53, s{sH}, 17
          s_lshl_b32 s54, s57, 9
          s_add_u32 s53, s53, s54
          s_add_u32 s53, s53, {OF}
          s_add_u32 s54, s53, 65536
          v_and_b32 v{T + 2}, 31, v1
          v_lshrrev_b32 v{T + 3}, 5, v1
          v_lshlrev_b32 v{T + 2}, 4, v{T + 2}
          v_lshl_add_u32 v{T + 2}, v{T + 3}, 15, v{T + 2}
          s_nop 1
          v_mov_b32 v{T}, v{O + 12}
          v_mov_b32 v{T + 1}, v{O + 12}
          v_permlane32_swap_b32 v{T}, v{T + 1}""")
    a("s_mov_b32 exec_lo, 0")
    for r in range(12, 16):
        a(f"v_mov_b32 v{O + r}, 0")
    a(f"""s_mov_b64 exec, -1
          s_mov_b32 s59, {f32(2.0 ** 100)}
          v_add_f32_e64 v{T}, abs(v{O}), v{T + 1}""")
    for r in range(1, 16):
        a(f"v_add_f32_e64 v{T}, abs(v{O + r}), v{T}")
    a(f"""v_cmp_nlt_f32_e64 vcc, v{T}, s59
          v_rcp_f32 v{T}, v{T + 1}
          s_cmp_eq_u32 s58, 0
          s_cbranch_scc1 {pfx}_store
          s_cbranch_vccnz {pfx}_slow""")
    a.label(f"{pfx}_store")
    for r in range(16):
        a(f"v_mul_f32 v{O + r}, v{O + r}, v{T}")
    for r in range(8):
        a(f"v_cvt_pk_bf16_f32 v{P + r}, v{O + 2 * r}, v{O + 2 * r + 1}")
    a(f"""buffer_store_dwordx4 {vr(P, 4)}, v{T + 2}, s[36:39], s53 offen {SC}
          buffer_store_dwordx4 {vr(P + 4, 4)}, v{T + 2}, s[36:39], s54 offen {SC}
          s_branch {pfx}_end""")
    a.label(f"{pfx}_slow")
    a(f"""v_mov_b32 v{T}, 0xff800000
          s_mov_b32 s60, s58
          s_mov_b32 s61, {NT}""")
    a.label(f"{pfx}_slow1")
    a(f"""buffer_load_dwordx4 {vr(KV, 4)}, v{VL}, s[36:39], s60 offen {SC}
          buffer_load_dwordx4 {vr(KV + 4, 4)}, v{VL}, s[36:39], s60 offen offset:1024 {SC}
          s_waitcnt vmcnt(0)
          {MF} {vr(SA, 16)}, {vr(KV, 4)}, {vr(Q, 4)}, 0
          {MF} {vr(SA, 16)}, {vr(KV + 4, 4)}, {vr(Q + 4, 4)}, {vr(SA, 16)}""")
    for r in range(0, 16, 2):
        a(f"v_max3_f32 v{T}, v{T}, v{SA + r}, v{SA + r + 1}")
    a(f"""s_add_u32 s60, s60, 4096
          s_sub_u32 s61, s61, 1
          s_cmp_lg_u32 s61, 0
          s_cbranch_scc1 {pfx}_slow1
          v_mov_b32 v{T + 1}, v{T}
          v_permlane32_swap_b32 v{T}, v{T + 1}
          v_max_f32 v{T}, v{T}, v{T + 1}
          v_sub_f32 v{NM}, 0, v{T}""")
    for r in range(1, 16):
        a(f"v_mov_b32 v{NM + r}, v{NM}")
    for r in range(16):
        a(f"v_mov_b32 v{O + r}, 0")
    a(f"""s_mov_b32 s60, s58
          s_mov_b32 s61, {NT}""")
    a.label(f"{pfx}_slow2")
    for i in range(4):
        a(f"buffer_load_dwordx4 {vr(KV + 4 * i, 4)}, v{VL}, s[36:39], s60 offen offset:{1024 * i} {SC}")
    a(f"""s_waitcnt vmcnt(0)
          {MF} {vr(SA, 16)}, {vr(KV, 4)}, {vr(Q, 4)}, {vr(NM, 16)}
          {MF} {vr(SA, 16)}, {vr(KV + 4, 4)}, {vr(Q + 4, 4)}, {vr(SA, 16)}""")
    for r in range(16):
        a(f"v_exp_f32 v{SA + r}, v{SA + r}")
    for r in range(8):
        a(f"v_cvt_pk_bf16_f32 v{P + r}, v{SA + 2 * r}, v{SA + 2 * r + 1}")
    a(f"""{MF} {vr(O, 16)}, {vr(KV + 8, 4)}, {vr(P, 4)}, {vr(O, 16)}
          {MF} {vr(O, 16)}, {vr(KV + 12, 4)}, {vr(P + 4, 4)}, {vr(O, 16)}
          s_add_u32 s60, s60, 4096
          s_sub_u32 s61, s61, 1
          s_cmp_lg_u32 s61, 0
          s_cbranch_scc1 {pfx}_slow2
          s_mov_b32 s58, 0
          s_nop 7
          s_branch {pfx}_fin""")
    a.label(f"{pfx}_end")


G_ACC, G_DR, G_TR = 64, 2, 34
RING = 4


class Seg:
    def __init__(self, n, tsrd, vt, st, tstep, vd, sd, dstep, va, pofs, tr_is_a):
        self.__dict__.update(locals())


def gloop(a, segs, sM, hooks=None):
    steps = [(sg, i) for sg in segs for i in range(sg.n)]
    N = len(steps)
    hooks = hooks or {}

    def loads(k):
        sg, _ = steps[k]
        d = G_DR + 8 * (k % RING)
        return [f"s_add_u32 m0, s{sM}, {(k % RING) * 2048}",
                f"buffer_load_dwordx4 {vr(d, 4)}, v{sg.vd}, s[36:39], s{sg.sd} offen {SC}",
                f"buffer_load_dwordx4 v{sg.vt}, {sr(sg.tsrd, 4)}, s{sg.st} offen lds",
                f"buffer_load_dwordx4 {vr(d + 4, 4)}, v{sg.vd + 1}, s[36:39], s{sg.sd} offen {SC}",
                f"buffer_load_dwordx4 v{sg.vt + 1}, {sr(sg.tsrd, 4)}, s{sg.st} offen offset:1024 lds",
                f"s_add_u32 s{sg.st}, s{sg.st}, {sg.tstep}",
                f"s_add_u32 s{sg.sd}, s{sg.sd}, {sg.dstep}"]

    def treads(k):
        sg, _ = steps[k]
        for ti in range(2):
            for p in range(2):
                b = G_TR + 8 * (k & 1) + 4 * ti + 2 * p
                a(f"ds_read_b64_tr_b16 {vr(b, 2)}, v{sg.va + ti} offset:{(k % RING) * 2048 + p * sg.pofs}")

    for k in range(min(RING - 1, N)):
        for x in loads(k):
            a(x)
    a(f"s_waitcnt vmcnt({4 * (min(RING - 1, N) - 1)})")
    treads(0)
    for k in range(N):
        if k in hooks:
            hooks[k]()
        sg, _ = steps[k]
        mf = []
        for ti, di in ((0, 0), (0, 1), (1, 1), (1, 0)):
            t = vr(G_TR + 8 * (k & 1) + 4 * ti, 4)
            d = vr(G_DR + 8 * (k % RING) + 4 * di, 4)
            m, n = (ti, di) if sg.tr_is_a else (di, ti)
            acc = vr(G_ACC + 16 * (2 * m + n), 16)
            cin = "0" if k == 0 else acc
            mf.append(f"{MF} {acc}, {t}, {d}, {cin}" if sg.tr_is_a else f"{MF} {acc}, {d}, {t}, {cin}")
        ld = loads(k + RING - 1) if k + RING - 1 < N else []
        a("s_waitcnt lgkmcnt(0)")
        a(mf[0])
        for x in ld[:3]:
            a(x)
        a(mf[1])
        for x in ld[3:]:
            a(x)
        a(mf[2])
        if k + 1 < N:
            a(f"s_waitcnt vmcnt({4 * (min(k + RING, N) - (k + 2))})")
            treads(k + 1)
        a(mf[3])


def g_addr_tr(a, vt, va, stride, hi_rows, sM, last_dup=False):
    a(f"""v_lshrrev_b32 v62, 3, v1
          v_and_b32 v63, 7, v1
          v_bfe_u32 v{vt}, v1, 4, 1
          v_lshlrev_b32 v{vt}, 2, v{vt}
          v_xor_b32 v63, v63, v{vt}""")
    if last_dup:
        a("v_min_u32 v63, 6, v63")
    a(f"""v_mul_u32_u24 v62, {stride}, v62
          v_lshl_add_u32 v{vt}, v63, 4, v62
          v_add_u32 v{vt + 1}, {8 * stride - 1024}, v{vt}""")
    if va is not None:
        a(f"""v_lshrrev_b32 v62, 5, v1
              v_mul_u32_u24 v62, {hi_rows}, v62
              v_bfe_u32 v63, v1, 2, 2
              v_add_u32 v62, v62, v63
              v_lshlrev_b32 v62, 7, v62
              v_bfe_u32 v63, v1, 3, 1
              v_lshl_add_u32 v62, v63, 6, v62
              v_bfe_u32 v63, v1, 4, 1
              v_lshl_add_u32 v62, v63, 5, v62
              v_and_b32 v63, 3, v1
              v_lshl_add_u32 v62, v63, 3, v62
              v_add_u32 v{va}, s{sM}, v62
              v_xor_b32 v{va + 1}, 64, v{va}""")


def g_addr_dir(a, vd, hi_stride, mask24):
    a(f"""v_lshrrev_b32 v62, 5, v1
          v_mul_u32_u24 v62, {hi_stride}, v62
          v_and_b32 v63, 31, v1
          v_lshl_add_u32 v{vd}, v63, 4, v62
          v_add_u32 v{vd + 1}, 512, v{vd}""")
    if mask24:
        a(f"""s_mov_b32 exec_lo, 0xff000000
              s_mov_b32 exec_hi, 0xff000000
              v_mov_b32 v{vd + 1}, {OOB}
              s_mov_b64 exec, -1""")


def g_reduce(a, pfx, sW, RES):
    a(f"""v_lshlrev_b32 v62, 4, v1
          s_mul_i32 s53, s{sW}, 12288
          v_add_u32 v63, s53, v62
          s_barrier""")
    for w in range(1, 4):
        a(f"s_cmp_eq_u32 s{sW}, {w}\ns_cbranch_scc1 {pfx}_r{w}")
    for w in range(4):
        if w:
            a.label(f"{pfx}_r{w}")
        a("s_nop 7")
        for q in range(4):
            if q == w:
                continue
            for g in range(4):
                a(f"ds_write_b128 v62, {vr(G_ACC + 16 * q + 4 * g, 4)} offset:{q * 12288 + ((w - q - 1) % 4) * 4096 + g * 1024}")
        for r in range(16):
            a(f"v_mov_b32 v{RES + r}, v{G_ACC + 16 * w + r}")
        if w < 3:
            a(f"s_branch {pfx}_rj")
    a.label(f"{pfx}_rj")
    a("s_waitcnt lgkmcnt(0)\ns_barrier")
    for sl in range(3):
        for g in range(4):
            a(f"ds_read_b128 {vr(G_ACC + 16 * sl + 4 * g, 4)}, v63 offset:{sl * 4096 + g * 1024}")
    for sl in range(3):
        a(f"s_waitcnt lgkmcnt({8 - 4 * sl})")
        for r in range(16):
            a(f"v_add_f32 v{RES + r}, v{RES + r}, v{G_ACC + 16 * sl + r}")


def g1(a, idreg, pfx, done):
    sW, sM, sT, sD, sF0, sD0 = 26, 27, 48, 49, 50, 51
    VT, VD, VA, VB = 50, 52, 54, 56
    lane_wave(a)
    a(f"""s_lshr_b32 s54, s{idreg}, 3
          s_cmp_ge_u32 s54, 28
          s_cbranch_scc1 {done}
          s_and_b32 s53, s{idreg}, 7
          s_mul_i32 s53, s53, 28
          s_add_u32 s53, s53, s54
          s_lshr_b32 s{sF0}, s53, 3
          s_and_b32 s{sD0}, s53, 7
          s_lshl_b32 s{sM}, s{sW}, 13
          s_mul_i32 s{sT}, s{sW}, {16 * 3584}
          s_lshl_b32 s53, s{sF0}, 7
          s_add_u32 s{sT}, s{sT}, s53
          s_mul_i32 s{sD}, s{sW}, 14336
          s_mul_i32 s53, s{sD0}, 896
          s_add_u32 s{sD}, s{sD}, s53
          s_add_u32 s{sD}, s{sD}, {HT}""")
    g_addr_tr(a, VT, VA, 3584, 8, sM)
    g_addr_dir(a, VD, 7168, True)
    a("s_waitcnt lgkmcnt(0)")
    srd(a, 28, P_W1, S * F * 2)
    srd(a, 32, P_B1, F * 2)
    srd(a, 36, P_WS, WS_BYTES)
    gloop(a, [Seg(32, 28, VT, sT, 64 * 3584, VD, sD, 4 * 14336, VA, 512, True)], sM)
    a(f"""s_lshr_b32 s55, s{sW}, 1
          s_lshl_b32 s53, s{sF0}, 1
          s_add_u32 s55, s55, s53
          s_lshl_b32 s53, s55, 6
          v_lshrrev_b32 v{VB}, 5, v1
          v_lshlrev_b32 v{VB + 1}, 3, v{VB}""")
    for g in range(4):
        a(f"buffer_load_dwordx2 {vr(2 + 2 * g, 2)}, v{VB + 1}, s[32:35], s53 offen offset:{16 * g}")
    RES = 18
    g_reduce(a, pfx, sW, RES)
    a(f"""s_mul_i32 s55, s55, {2 * 14336}
          s_mul_i32 s53, s{sD0}, 896
          s_add_u32 s55, s55, s53
          s_add_u32 s55, s55, {UF}
          s_add_u32 s54, s55, 14336
          s_and_b32 s53, s{sW}, 1
          s_cmp_eq_u32 s53, 0
          s_cselect_b64 exec, -1, 0
          v_mov_b32 v{VD + 1}, v{VD}
          s_mov_b64 exec, -1
          s_mov_b32 s56, {f32(-2 * 1.4426950408889634 * 0.7978845608028654 * 0.044715)}
          v_mov_b32 v34, {f32(-2 * 1.4426950408889634 * 0.7978845608028654)}
          s_waitcnt vmcnt(0)""")
    for r in range(16):
        b = 2 + r // 2
        a(f"v_lshlrev_b32 v{64 + r}, 16, v{b}" if r % 2 == 0 else f"v_and_b32 v{64 + r}, 0xffff0000, v{b}")
    for r in range(16):
        a(f"v_add_f32 v{RES + r}, v{RES + r}, v{64 + r}")
    for r in range(16):
        a(f"v_mul_f32 v{64 + r}, v{RES + r}, v{RES + r}")
    for r in range(16):
        a(f"v_fma_f32 v{64 + r}, v{64 + r}, s56, v34")
    for r in range(16):
        a(f"v_mul_f32 v{64 + r}, v{64 + r}, v{RES + r}")
    for r in range(16):
        a(f"v_exp_f32 v{64 + r}, v{64 + r}")
    for r in range(16):
        a(f"v_add_f32 v{64 + r}, 1.0, v{64 + r}")
    for r in range(16):
        a(f"v_rcp_f32 v{64 + r}, v{64 + r}")
    for r in range(16):
        a(f"v_mul_f32 v{64 + r}, v{64 + r}, v{RES + r}")
    for r in range(8):
        a(f"v_cvt_pk_bf16_f32 v{2 + r}, v{64 + 2 * r}, v{65 + 2 * r}")
    a(f"""buffer_store_dwordx4 v[2:5], v{VD + 1}, s[36:39], s55 offen {SC}
          buffer_store_dwordx4 v[6:9], v{VD + 1}, s[36:39], s54 offen {SC}""")


def fin(a, idreg, pfx):
    sW, sM, sT, sD, sS0, sD0, sT2, sD2 = 26, 27, 48, 49, 50, 51, 52, 58
    VT, VD, VA, VT2, VD2 = 50, 52, 54, 56, 58
    lane_wave(a)
    a(f"""s_and_b32 s53, s{idreg}, 7
          s_lshr_b32 s54, s{idreg}, 3
          s_lshl_b32 s53, s53, 2
          s_lshr_b32 s55, s54, 3
          s_add_u32 s{sS0}, s53, s55
          s_and_b32 s{sD0}, s54, 7
          s_lshl_b32 s{sM}, s{sW}, 13
          s_mul_i32 s{sT}, s{sW}, {16 * 4096}
          s_lshl_b32 s53, s{sS0}, 7
          s_add_u32 s{sT}, s{sT}, s53
          s_mul_i32 s{sD}, s{sW}, 14336
          s_mul_i32 s53, s{sD0}, 896
          s_add_u32 s{sD}, s{sD}, s53
          s_add_u32 s{sD}, s{sD}, {UF}
          s_lshr_b32 s53, s{sW}, 1
          s_mul_i32 s53, s53, 28
          s_and_b32 s54, s{sW}, 1
          s_lshl_b32 s54, s54, 4
          s_add_u32 s53, s53, s54
          s_mul_i32 s{sT2}, s53, 896
          s_mul_i32 s53, s{sD0}, 112
          s_add_u32 s{sT2}, s{sT2}, s53
          s_lshl_b32 s{sD2}, s{sW}, 16
          s_lshl_b32 s53, s{sS0}, 10
          s_add_u32 s{sD2}, s{sD2}, s53
          s_add_u32 s{sD2}, s{sD2}, {OF}""")
    g_addr_tr(a, VT, VA, 4096, 4, sM)
    g_addr_dir(a, VD, 7168, True)
    g_addr_tr(a, VT2, None, 896, 4, sM, last_dup=True)
    g_addr_dir(a, VD2, 32768, False)
    a("s_waitcnt lgkmcnt(0)")
    srd(a, 28, P_W2, S * F * 2)
    srd(a, 32, P_WO, D * D * 2)
    srd(a, 36, P_WS, WS_BYTES)
    srd(a, 40, P_X, S * D * 2)
    srd(a, 44, P_B2, S * 2)
    gloop(a, [Seg(28, 28, VT, sT, 64 * 4096, VD, sD, 4 * 14336, VA, 1024, False),
              Seg(8, 32, VT2, sT2, 56 * 896, VD2, sD2, 8 * 32768, VA, 1024, True)], sM)
    a(f"""s_and_b32 s53, s{sW}, 1
          s_lshl_b32 s54, s{sS0}, 1
          s_add_u32 s53, s53, s54
          s_lshl_b32 s59, s53, 6
          s_mul_i32 s60, s53, {32 * 896}
          s_mul_i32 s53, s{sD0}, 112
          s_add_u32 s60, s60, s53
          s_lshr_b32 s53, s{sW}, 1
          s_lshl_b32 s54, s53, 6
          s_add_u32 s60, s60, s54
          v_and_b32 v56, 31, v1
          v_lshrrev_b32 v57, 5, v1
          v_lshlrev_b32 v58, 1, v56
          v_mul_u32_u24 v56, 896, v56
          v_lshl_add_u32 v59, v57, 4, v56
          v_lshl_add_u32 v56, v57, 3, v56
          v_add_u32 v60, 32, v59
          s_cmp_eq_u32 s53, 1
          s_cselect_b32 exec_hi, -1, 0
          s_mov_b32 exec_lo, 0
          v_mov_b32 v60, {OOB}
          s_mov_b64 exec, -1""")
    for g in range(4):
        a(f"buffer_load_dwordx2 {vr(2 + 2 * g, 2)}, v56, s[40:43], s60 offen offset:{16 * g}")
    a("buffer_load_ushort v10, v58, s[44:47], s59 offen")
    RES = 18
    g_reduce(a, pfx, sW, RES)
    srd(a, 40, P_OUT, S * D * 2)
    a("s_waitcnt vmcnt(0)\nv_lshlrev_b32 v10, 16, v10")
    for r in range(16):
        b = 2 + r // 2
        a(f"v_lshlrev_b32 v{64 + r}, 16, v{b}" if r % 2 == 0 else f"v_and_b32 v{64 + r}, 0xffff0000, v{b}")
    for r in range(16):
        a(f"v_add_f32 v{RES + r}, v{RES + r}, v10")
    for r in range(16):
        a(f"v_add_f32 v{RES + r}, v{RES + r}, v{64 + r}")
    for r in range(8):
        a(f"v_cvt_pk_bf16_f32 v{2 + r}, v{RES + 2 * r}, v{RES + 2 * r + 1}")
    a("""v_permlane32_swap_b32 v2, v4
         v_permlane32_swap_b32 v3, v5
         v_permlane32_swap_b32 v6, v8
         v_permlane32_swap_b32 v7, v9
         buffer_store_dwordx4 v[2:5], v59, s[40:43], s60 offen
         buffer_store_dwordx4 v[6:9], v60, s[40:43], s60 offen""")
```

```python
import sys
from asmlib import Asm
import comps as C

NAME = "parallel_sum__softmax_full_mha__mixer_token_mlp__prompt"
REF = f"cdna_kernels/{NAME}.s.ref"


def kernel(name, body, nv=128):
    a = Asm()
    body(a)
    lines = a.finish()
    txt = f".globl {name}\n.p2align 8\n.type {name},@function\n{name}:\n"
    txt += "\n".join(("" if ln.endswith(":") else "    ") + ln for ln in lines) + "\n"
    kd = f""".p2align 6
.amdhsa_kernel {name}
  .amdhsa_next_free_vgpr {nv}
  .amdhsa_next_free_sgpr 72
  .amdhsa_accum_offset {nv}
  .amdhsa_group_segment_fixed_size 0
  .amdhsa_kernarg_size 88
  .amdhsa_user_sgpr_count 2
  .amdhsa_user_sgpr_kernarg_segment_ptr 1
  .amdhsa_system_sgpr_workgroup_id_x 1
.end_amdhsa_kernel
"""
    return txt, kd


def two_roles(a, pfx, role_a, role_b):
    a(f"s_cmp_ge_u32 s2, 512\ns_cbranch_scc1 {pfx}_exit")
    C.load_args(a)
    a(f"s_cmp_ge_u32 s2, 256\ns_cbranch_scc1 {pfx}_b")
    role_a(a)
    a.label(f"{pfx}_exit")
    a("s_endpgm")
    a.label(f"{pfx}_b")
    a("s_sub_u32 s3, s2, 256")
    role_b(a)
    a.label(f"{pfx}_exit2")
    a("s_endpgm")


def k1(a):
    two_roles(a, "k1", lambda a: C.qkv(a, 2, "qkv", "k1_exit"), lambda a: C.ln(a, 3, "ln"))


def k2(a):
    two_roles(a, "k2", lambda a: C.att(a, 2, "att"), lambda a: C.g1(a, 3, "g1", "k2_exit2"))


def k3(a):
    a("s_cmp_ge_u32 s2, 256\ns_cbranch_scc1 k3_exit")
    C.load_args(a)
    C.fin(a, 2, "fin")
    a.label("k3_exit")
    a("s_endpgm")


def build(path):
    head = [ln for ln in open(REF).read().split("\n") if ln.startswith(";") and "@launch" not in ln and "Override" not in ln and "grid=ceil" not in ln]
    ks = [("k1_kernel", k1, 512), ("k2_kernel", k2, 512), ("k3_kernel", k3, 256)]
    out = "\n".join(head) + "\n"
    for n, _, g in ks:
        out += f"; @launch kernel={n} grid=({g},1,1) block=(256,1,1) lds=81920\n"
    out += '.amdgcn_target "amdgcn-amd-amdhsa--gfx950"\n.text\n'
    kds = ""
    for n, b, _ in ks:
        t, kd = kernel(n, b)
        out += t
        kds += kd
    out += '.section .rodata,"a"\n' + kds
    open(path, "w").write(out)


if __name__ == "__main__":
    build(sys.argv[1] if len(sys.argv) > 1 else f"cdna_kernels/{NAME}.s")
```

```python
import struct

S, D, H, DH, F = 2048, 448, 16, 28, 1792
QF, KVF, HT, UF, OF, FLAGS = 0, 2 << 20, 6 << 20, 8 << 20, 10 << 20, 12 << 20
WS_BYTES = 16 << 20
OOB = 0x40000000
P_X, P_WQKV, P_WO, P_W1, P_B1, P_W2, P_B2, P_OUT, P_DBG, P_WS = 4, 6, 8, 12, 14, 16, 18, 20, 22, 24
SC = "sc1"


OPT = set()


def f32(x):
    return "0x%08x" % struct.unpack("<I", struct.pack("<f", x))[0]


EPS = f32(1e-5)
INV_D = f32(1.0 / D)
QSCALE = DH ** -0.5 * 1.4426950408889634


def vr(b, n):
    return f"v[{b}:{b + n - 1}]"


def sr(b, n):
    return f"s[{b}:{b + n - 1}]"


def load_args(a):
    a("""s_load_dwordx16 s[4:19], s[0:1], 0
         s_load_dwordx4 s[20:23], s[0:1], 64
         s_load_dwordx2 s[24:25], s[0:1], 80""")


def srd(a, d, p, nbytes):
    a(f"""s_mov_b32 s{d}, s{p}
          s_mov_b32 s{d + 1}, s{p + 1}
          s_mov_b32 s{d + 2}, {nbytes}
          s_mov_b32 s{d + 3}, 0x20000""")


def lane_wave(a, vlane=1, swave=26):
    a(f"""v_lshrrev_b32 v{vlane}, 6, v0
          s_nop 0
          v_readfirstlane_b32 s{swave}, v{vlane}
          v_and_b32 v{vlane}, 63, v0""")


MF = "v_mfma_f32_32x32x16_bf16"


def probe(a, i):
    pass


def PR(a, i):
    probe(a, i)


def qkv_ids(a, idreg):
    a(f"""s_and_b32 s53, s{idreg}, 7
          s_lshr_b32 s54, s{idreg}, 3
          s_lshr_b32 s55, s53, 1
          s_lshl_b32 s55, s55, 2
          s_and_b32 s56, s54, 3
          s_add_u32 s27, s55, s56
          s_and_b32 s53, s53, 1
          s_lshl_b32 s53, s53, 3
          s_lshr_b32 s54, s54, 2
          s_add_u32 s48, s53, s54""")


QKV_BARRIERS = 8


def qkv_touch(a, idreg):
    a(f"""s_lshr_b32 s54, s{idreg}, 3
          s_and_b32 s53, s{idreg}, 7
          s_and_b32 s55, s26, 1
          s_cmp_ge_u32 s26, 6
          s_cbranch_scc1 qt_w
          s_lshr_b32 s53, s53, 1
          s_lshl_b32 s53, s53, 5
          s_add_u32 s53, s53, s54
          s_mul_i32 s53, s53, {16 * 896}
          s_lshl_b32 s56, s55, 9
          s_add_u32 s53, s53, s56
          s_add_u32 s53, s53, 256
          v_and_b32 v2, 15, v1
          v_mul_u32_u24 v2, 896, v2
          v_lshrrev_b32 v3, 4, v1
          v_lshl_add_u32 v2, v3, 7, v2
          s_cmp_eq_u32 s55, 0
          s_cselect_b64 exec, -1, 0xffff""")
    srd(a, 28, P_X, S * D * 2)
    a("s_branch qt_done")
    a.label("qt_w")
    a(f"""s_and_b32 s53, s53, 1
          s_mul_i32 s53, s53, 1280
          s_lshl_b32 s54, s54, 1
          s_add_u32 s54, s54, s55
          s_mul_i32 s54, s54, {5 * 2688}
          s_add_u32 s53, s53, s54
          s_add_u32 s53, s53, {128 * 2688}
          v_mul_u32_u24 v3, 5958, v1
          v_lshrrev_b32 v3, 16, v3
          v_mul_u32_u24 v2, 11, v3
          v_sub_u32 v2, v1, v2
          v_lshlrev_b32 v2, 7, v2
          v_mul_u32_u24 v3, 2688, v3
          v_add_u32 v2, v2, v3
          s_mov_b32 exec_hi, 0x7fffff""")
    srd(a, 28, P_WQKV, D * 3 * D * 2)
    a.label("qt_done")
    a("buffer_load_dword v126, v2, s[28:31], s53 offen\ns_mov_b64 exec, -1")


def qkv_wload(a):
    WR, VW, sWO, sWM = 34816, 46, 50, 52
    a(f"""s_and_b32 s55, s26, 3
          s_mul_i32 s{sWO}, s55, {16 * 2688}
          s_mul_i32 s53, s48, 168
          s_add_u32 s{sWO}, s{sWO}, s53
          s_mul_i32 s{sWM}, s55, 3072
          s_add_u32 s{sWM}, s{sWM}, {WR}""")
    for i in range(3):
        a(f"""v_add_u32 v2, {64 * i}, v1
              v_mul_u32_u24 v3, 43691, v2
              v_lshrrev_b32 v3, 19, v3
              v_mul_u32_u24 v4, 12, v3
              v_sub_u32 v4, v2, v4
              v_min_u32 v4, 10, v4
              v_mul_u32_u24 v3, 2688, v3
              v_lshl_add_u32 v3, v4, 4, v3
              v_subrev_u32 v{VW + i}, {1024 * i}, v3""")
    a("s_waitcnt lgkmcnt(0)")
    srd(a, 32, P_WQKV, D * 3 * D * 2)

    def dma_w(c):
        a(f"s_add_u32 m0, s{sWM}, {(c % 3) * 12288}")
        for i in range(3):
            a(f"buffer_load_dwordx4 v{VW + i}, s[32:35], s{sWO} offen offset:{1024 * i} lds")
        a(f"s_add_u32 s{sWO}, s{sWO}, {64 * 2688}")

    return dma_w


def qkv(a, idreg, pfx, done):
    CP, XR, WR, CS, RS = 0, 2048, 34816, 71680, 73728
    ACC, XFS, WF = 64, (2, 112), 18
    VX, VW, XA, WA = 42, 46, 49, 53
    SUM, SSQ, CSV, ONES, T = 57, 58, 59, 62, 63
    sW, sRB, sJ, sXO, sWO, sXM, sWM = 26, 27, 48, 49, 50, 51, 52
    a(f"""s_lshl_b32 s53, s{sRB}, 2
          s_add_u32 s57, s53, s{sW}
          s_mul_i32 s{sXO}, s57, {32 * 896}
          s_lshl_b32 s{sXM}, s{sW}, 12
          s_add_u32 s{sXM}, s{sXM}, {XR}""")
    a(f"""v_lshrrev_b32 v2, 3, v1
          v_and_b32 v3, 7, v1
          v_lshrrev_b32 v4, 1, v2
          v_xor_b32 v3, v3, v4
          v_lshlrev_b32 v3, 4, v3
          v_mul_u32_u24 v2, 896, v2
          v_add_u32 v{VX}, v2, v3
          v_xor_b32 v3, 64, v3
          v_add_u32 v2, v2, v3
          v_add_u32 v{VX + 1}, {7168 - 1024}, v2
          v_add_u32 v{VX + 2}, {2 * (7168 - 1024)}, v{VX}
          v_add_u32 v{VX + 3}, {3 * (7168 - 1024)}, v2""")
    a("s_waitcnt lgkmcnt(0)")
    srd(a, 28, P_X, S * D * 2)
    srd(a, 36, P_WS, WS_BYTES)
    PR(a, 0)

    def dma_x(c, i):
        if i == 0:
            a(f"s_add_u32 m0, s{sXM}, {(c % 2) * 16384}")
        a(f"buffer_load_dwordx4 v{VX + i}, s[28:31], s{sXO} offen offset:{1024 * i} lds")
        if i == 3:
            a(f"s_add_u32 s{sXO}, s{sXO}, 128")

    for c in range(2):
        for i in range(4):
            dma_x(c, i)
    a(f"""v_and_b32 v2, 31, v1
          v_lshrrev_b32 v3, 5, v1
          v_bfe_u32 v4, v1, 1, 3
          v_xor_b32 v4, v4, v3
          v_lshlrev_b32 v4, 4, v4
          v_lshl_add_u32 v4, v2, 7, v4
          v_add_u32 v4, s{sXM}, v4
          v_bfe_u32 v5, v1, 2, 2
          v_lshl_add_u32 v5, v3, 3, v5
          v_mul_u32_u24 v5, 192, v5
          v_bfe_u32 v6, v1, 4, 1
          v_lshl_add_u32 v5, v6, 5, v5
          v_and_b32 v6, 3, v1
          v_lshl_add_u32 v5, v6, 3, v5
          v_add_u32 v5, {WR}, v5""")
    for kk in range(4):
        a(f"""s_add_u32 s53, s{sW}, {kk}
              s_and_b32 s53, s53, 3
              s_lshl_b32 s54, s53, 5
              s_mul_i32 s53, s53, {16 * 192}
              v_xor_b32 v{XA + kk}, s54, v4
              v_add_u32 v{WA + kk}, s53, v5""")
    a(f"""v_mov_b32 v{ONES}, 0x3f803f80
          v_mov_b32 v{SUM}, 0
          v_mov_b32 v{SSQ}, 0
          v_mov_b32 v{CSV}, 0
          v_mov_b32 v{CSV + 1}, 0
          v_mov_b32 v{CSV + 2}, 0""")
    for i in range(3):
        a(f"""s_mul_i32 s53, s{sJ}, 3
              s_add_u32 s53, s53, {i}
              s_and_b32 s54, s53, 15
              s_lshl_b32 s54, s54, 6
              s_add_u32 s54, s54, s57
              s_lshl_b32 s55, s54, 11
              s_lshl_b32 s54, s54, 12
              s_add_u32 s54, s54, {KVF}
              s_cmp_ge_u32 s53, 32
              s_cselect_b32 s56, 2048, 0
              s_add_u32 s54, s54, s56
              s_cmp_lt_u32 s53, 16
              s_cselect_b32 s{58 + i}, s55, s54
              s_cselect_b32 s{61 + i}, {f32(QSCALE)}, 1.0""")
    a(f"""s_cmp_ge_u32 s{sJ}, 11
          s_cbranch_scc1 {pfx}_vvv
          s_cmp_eq_u32 s{sJ}, 10
          s_cbranch_scc1 {pfx}_nnv""")

    def wreads(c, kk):
        return [f"ds_read_b64_tr_b16 {vr(WF + 12 * (kk & 1) + 4 * i + 2 * p, 2)}, v{WA + kk} offset:{(c % 3) * 12288 + 4 * p * 192 + 56 * i}"
                for i in range(3) for p in range(2)]

    def enter(c):
        a(f"s_waitcnt vmcnt({4 if c == 0 else 3 if c < 6 else 0})")
        a("s_barrier")
        PR(a, 1 + c)
        for kk in range(4):
            a(f"ds_read_b128 {vr(XFS[c % 2] + 4 * kk, 4)}, v{XA + kk} offset:{(c % 2) * 16384}")
        for x in wreads(c, 0):
            a(x)

    def variant(types):
        R, NMR, RQ, NQ, A32, AHI, ARS, AST = 42, 43, 44, 45, 46, 47, 48, 63

        def mf(c, kk, i):
            x, w, acc = vr(XFS[c % 2] + 4 * kk, 4), vr(WF + 12 * (kk & 1) + 4 * i, 4), vr(ACC + 16 * i, 16)
            cin = "0" if (c == 0 and kk == 0) else acc
            return f"{MF} {acc}, {w}, {x}, {cin}" if types[i] == "N" else f"{MF} {acc}, {x}, {w}, {cin}"

        stats0 = f"""v_mov_b32 v44, v{CSV}
              v_mov_b32 v45, v{CSV + 1}
              v_mov_b32 v47, v{CSV + 2}
              v_and_b32 v{A32}, 31, v1
              s_lshl_b32 s53, s{sW}, 2
              v_permlane32_swap_b32 v44, v{CSV}
              v_permlane32_swap_b32 v45, v{CSV + 1}
              v_permlane32_swap_b32 v47, v{CSV + 2}
              v_lshl_add_u32 v{AST}, v{A32}, 4, s53
              v_add_f32 v{CSV}, v44, v{CSV}
              v_add_f32 v{CSV + 1}, v45, v{CSV + 1}
              v_add_f32 v{CSV + 2}, v47, v{CSV + 2}
              ds_write_b32 v{AST}, v{CSV} offset:{CP}
              ds_write_b32 v{AST}, v{CSV + 1} offset:{CP + 512}
              ds_write_b32 v{AST}, v{CSV + 2} offset:{CP + 1024}""".split("\n")
        stats1 = f"""v_mov_b32 v42, v{SUM}
              v_mov_b32 v43, v{SSQ}
              v_lshlrev_b32 v{AST}, 4, v{A32}
              s_lshl_b32 s53, s{sW}, 9
              s_add_u32 s53, s53, {CS}
              v_permlane32_swap_b32 v42, v{SUM}
              v_permlane32_swap_b32 v43, v{SSQ}
              v_lshl_add_u32 v{A32}, v{A32}, 2, s53
              v_lshrrev_b32 v{AHI}, 5, v1
              v_lshl_add_u32 v{AHI}, v{AHI}, 4, s53
              v_add_f32 v{SUM}, v42, v{SUM}
              v_add_f32 v{SSQ}, v43, v{SSQ}
              v_mul_f32 v{SUM}, {INV_D}, v{SUM}
              v_mul_f32 v{SSQ}, {INV_D}, v{SSQ}
              v_fma_f32 v{SSQ}, -v{SUM}, v{SUM}, v{SSQ}
              v_max_f32 v{SSQ}, 0, v{SSQ}
              v_add_f32 v{SSQ}, {EPS}, v{SSQ}
              v_rsq_f32 v{R}, v{SSQ}
              s_nop 0
              v_mul_f32 v{NMR}, v{SUM}, v{R}
              v_sub_f32 v{NMR}, 0, v{NMR}""".split("\n")
        enter(0)
        for c in range(7):
            xf = XFS[c % 2]
            a("s_waitcnt lgkmcnt(6)")
            for r in range(0 if 'nodots' in OPT else 16):
                a(f"v_dot2c_f32_bf16 v{SSQ}, v{xf + r}, v{xf + r}")
                a(f"v_dot2c_f32_bf16 v{SUM}, v{xf + r}, v{ONES}")
            a("s_waitcnt lgkmcnt(0)")
            for r in range(4):
                for i in range(3):
                    a(f"v_dot2c_f32_bf16 v{CSV + i}, v{WF + 4 * i + r}, v{ONES}")
            for kk in range(3):
                rd = wreads(c, kk + 1)
                if kk and not (c == 6 and kk == 2):
                    a("s_waitcnt lgkmcnt(0)")
                for i in range(3):
                    a(mf(c, kk, i))
                    if i < 2:
                        for x in rd[3 * i:3 * i + 3]:
                            a(x)
                    elif c + 2 < 7:
                        dma_x(c + 2, kk)
                    if c == 6 and kk == 0:
                        for x in stats0[5 * i:5 * i + 5]:
                            a(x)
                    if c == 6 and kk == 1:
                        for x in stats1[7 * i:7 * i + 7]:
                            a(x)
                    if c == 6 and kk == 2 and i == 1:
                        a("s_waitcnt lgkmcnt(6)")
                        for j in range(3):
                            b = 112 + 4 * j
                            a(f"""v_add_f32 v{b}, v{b}, v{b + 1}
                                  v_add_f32 v{b + 2}, v{b + 2}, v{b + 3}
                                  v_add_f32 v{CSV + j}, v{b}, v{b + 2}""")
                            if types[j] == "N":
                                a(f"ds_write_b32 v{A32}, v{CSV + j} offset:{128 * j}")
                if c == 6:
                    PR(a, 10 + kk)
                if c == 6 and kk == 1:
                    if "V" in types:
                        a(f"""ds_write_b32 v{A32}, v{R} offset:{RS - CS}
                              ds_write_b32 v{A32}, v{NMR} offset:{RS - CS + 128}""")
                    a("s_waitcnt lgkmcnt(0)\ns_barrier")
                    for j in range(3):
                        a(f"ds_read_b128 {vr(112 + 4 * j, 4)}, v{AST} offset:{CP + 512 * j}")
            a("s_waitcnt lgkmcnt(0)")
            if c < 6:
                enter(c + 1)
                a(mf(c, 3, 0)); a(mf(c, 3, 1))
                if c + 2 < 7:
                    dma_x(c + 2, 3)
                a(mf(c, 3, 2))
        PR(a, 8)
        bufs = {"NNN": (112, 2, 18), "NNV": (112, 2, None), "VVV": (None, None, None)}[types]
        RT, NT_ = (112, 2) if types == "VVV" else (18, 112)

        def csread(i):
            for g in range(4):
                a(f"ds_read_b128 {vr(bufs[i] + 4 * g, 4)}, v{AHI} offset:{128 * i + 32 * g}")

        def tokread(dst, ofs):
            for g in range(4):
                a(f"ds_read_b128 {vr(dst + 4 * g, 4)}, v{AHI} offset:{RS - CS + ofs + 32 * g}")

        if types[0] == "N":
            csread(0)
        else:
            tokread(RT, 0)
        for i in range(3):
            a(mf(6, 3, i))
        if types == "VVV":
            tokread(NT_, 128)
        else:
            csread(1)
            if types == "NNN":
                csread(2)
            else:
                tokread(RT, 0)
        a(f"""v_lshlrev_b32 v{AST}, 4, v1
              v_mov_b32 v55, 1.0
              s_mov_b32 exec_lo, 0
              v_mov_b32 v55, 0
              s_mov_b32 exec_lo, -1""")
        for i in range(3):
            acc = ACC + 16 * i
            if types[i] == "N":
                a(f"""v_mul_f32 v50, s{61 + i}, v{NMR}
                      v_mul_f32 v51, s{61 + i}, v{NMR}
                      v_mul_f32 v56, s{61 + i}, v{R}
                      v_mul_f32 v57, s{61 + i}, v{R}
                      v_mul_f32 v44, v56, v55
                      v_mul_f32 v45, v56, v55
                      v_mul_f32 v52, v50, v55
                      v_mul_f32 v53, v50, v55""")
                pend = {"NNN": (8, 4, 0), "NNV": (8, 8, 0)}[types][i]
                a(f"s_waitcnt lgkmcnt({pend})")
                for r in range(0, 16, 2):
                    pr = 56 if r < 12 else RQ
                    a(f"v_pk_mul_f32 {vr(acc + r, 2)}, {vr(acc + r, 2)}, {vr(pr, 2)}")
                for r in range(0, 16, 2):
                    pr = 50 if r < 12 else 52
                    a(f"v_pk_fma_f32 {vr(acc + r, 2)}, {vr(bufs[i] + r, 2)}, {vr(pr, 2)}, {vr(acc + r, 2)}")
                if types == "NNV" and i == 0:
                    tokread(NT_, 128)
            else:
                a(f"s_waitcnt lgkmcnt(0)\nv_mov_b32 v56, v{CSV + i}\nv_mov_b32 v57, v{CSV + i}")
                for r in range(0, 16, 2):
                    a(f"v_pk_mul_f32 {vr(acc + r, 2)}, {vr(acc + r, 2)}, {vr(RT + r, 2)}")
                for r in range(0, 16, 2):
                    a(f"v_pk_fma_f32 {vr(acc + r, 2)}, {vr(NT_ + r, 2)}, v[56:57], {vr(acc + r, 2)}")
            for r in range(8):
                a(f"v_cvt_pk_bf16_f32 v{acc + r}, v{acc + 2 * r}, v{acc + 2 * r + 1}")
            if types[i] == "V":
                a("s_mov_b32 exec_lo, 0x10000000\ns_mov_b32 exec_hi, 0x10000000")
                for r in range(8):
                    a(f"v_mov_b32 v{acc + r}, v{ONES}")
                a("s_mov_b64 exec, -1")
            a(f"buffer_store_dwordx4 {vr(acc, 4)}, v{AST}, s[36:39], s{58 + i} offen {SC}")
            a(f"buffer_store_dwordx4 {vr(acc + 4, 4)}, v{AST}, s[36:39], s{58 + i} offen offset:1024 {SC}")
        PR(a, 9)
        a(f"s_branch {done}")

    variant("NNN")
    a.label(f"{pfx}_nnv")
    variant("NNV")
    a.label(f"{pfx}_vvv")
    variant("VVV")


def wave_sum(a, regs, sdst):
    for m in ("row_shr:1", "row_shr:2", "row_shr:4", "row_shr:8"):
        for r in regs:
            a(f"v_add_f32_dpp v{r}, v{r}, v{r} {m} row_mask:0xf bank_mask:0xf bound_ctrl:1")
    for m in ("row_bcast:15 row_mask:0xa", "row_bcast:31 row_mask:0xc"):
        for r in regs:
            a(f"v_add_f32_dpp v{r}, v{r}, v{r} {m} bank_mask:0xf")
    for r, s in zip(regs, sdst):
        a(f"v_readlane_b32 s{s}, v{r}, 63")


def ln(a, idreg, pfx):
    sW = 26
    X, U, ST, ONES = 2, 10, 26, 30
    a(f"""s_lshl_b32 s53, s{idreg}, 3
          s_add_u32 s53, s53, s{sW}
          s_mul_i32 s53, s53, {2 * 896}
          v_lshlrev_b32 v31, 4, v1
          v_mov_b32 v{ONES}, 0x3f803f80
          s_waitcnt lgkmcnt(0)""")
    srd(a, 28, P_X, S * D * 2)
    srd(a, 36, P_WS, WS_BYTES)
    PR(a, 0)
    for r in range(4):
        a(f"v_mov_b32 v{ST + r}, 0")
    a("s_mov_b32 exec_hi, 0x00ffffff")
    a(f"buffer_load_dwordx4 {vr(X, 4)}, v31, s[28:31], s53 offen")
    a(f"buffer_load_dwordx4 {vr(X + 4, 4)}, v31, s[28:31], s53 offen offset:896")
    a(f"""s_mul_i32 s54, s{sW}, {2 * 960}
          v_add_u32 v32, s54, v31
          s_waitcnt vmcnt(0)""")
    PR(a, 1)
    for rnd in range(2):
        for r in range(4):
            for row in range(2):
                x = X + 4 * row + r
                a(f"v_dot2c_f32_bf16 v{ST + 2 * row}, v{x}, v{ONES}")
                a(f"v_dot2c_f32_bf16 v{ST + 2 * row + 1}, v{x}, v{x}")
        a("s_mov_b32 exec_hi, -1")
        wave_sum(a, [ST, ST + 1, ST + 2, ST + 3], [60, 61, 62, 63])
        for row in range(2):
            m, q = 33 + 2 * row, 34 + 2 * row
            a(f"""v_mov_b32 v{m}, {INV_D}
                  v_mul_f32 v{q}, s{61 + 2 * row}, v{m}
                  v_mul_f32 v{m}, s{60 + 2 * row}, v{m}
                  v_fma_f32 v{q}, -v{m}, v{m}, v{q}
                  v_max_f32 v{q}, 0, v{q}
                  v_add_f32 v{q}, {EPS}, v{q}
                  v_rsq_f32 v{q}, v{q}""")
        for r in range(4):
            a(f"v_mov_b32 v{ST + r}, 0")
        a("s_mov_b32 exec_hi, 0x00ffffff")
        for row in range(2):
            m, q = 33 + 2 * row, 34 + 2 * row
            for r in range(4):
                x, u = X + 4 * row + r, U + 8 * row + 2 * r
                a(f"""v_lshlrev_b32 v{u}, 16, v{x}
                      v_and_b32 v{u + 1}, 0xffff0000, v{x}
                      v_sub_f32 v{u}, v{u}, v{m}
                      v_sub_f32 v{u + 1}, v{u + 1}, v{m}
                      v_mul_f32 v{u}, v{u}, v{q}
                      v_mul_f32 v{u + 1}, v{u + 1}, v{q}
                      v_cvt_pk_bf16_f32 v{x}, v{u}, v{u + 1}""")
    PR(a, 2)
    a(f"""ds_write_b128 v32, {vr(X, 4)}
          ds_write_b128 v32, {vr(X + 4, 4)} offset:960
          s_mov_b32 exec_hi, -1
          v_bfe_u32 v10, v1, 2, 2
          v_mul_u32_u24 v10, 960, v10
          v_lshrrev_b32 v11, 4, v1
          v_lshl_add_u32 v10, v11, 5, v10
          v_and_b32 v11, 3, v1
          v_lshl_add_u32 v10, v11, 3, v10
          s_and_b32 s55, s{sW}, 3
          s_lshr_b32 s56, s{sW}, 2
          s_lshl_b32 s54, s55, 7
          s_mul_i32 s53, s56, {8 * 960}
          s_add_u32 s54, s54, s53
          v_add_u32 v10, s54, v10
          s_lshl_b32 s53, s{idreg}, 1
          s_add_u32 s53, s53, s56
          s_mul_i32 s53, s53, 7168
          s_lshl_b32 s54, s55, 10
          s_add_u32 s53, s53, s54
          s_add_u32 s53, s53, {HT}
          s_add_u32 s54, s53, 4096
          s_cmp_eq_u32 s55, 3
          s_cselect_b32 s54, {OOB}, s54
          s_waitcnt lgkmcnt(0)
          s_barrier
          ds_read_b64_tr_b16 v[12:13], v10
          ds_read_b64_tr_b16 v[14:15], v10 offset:{4 * 960}
          ds_read_b64_tr_b16 v[16:17], v10 offset:512
          ds_read_b64_tr_b16 v[18:19], v10 offset:{4 * 960 + 512}
          s_waitcnt lgkmcnt(2)
          buffer_store_dwordx4 v[12:15], v31, s[36:39], s53 offen {SC}
          s_waitcnt lgkmcnt(0)
          buffer_store_dwordx4 v[16:19], v31, s[36:39], s54 offen {SC}""")
    PR(a, 3)


def att_ids(a, idreg):
    a(f"""s_and_b32 s53, s{idreg}, 7
          s_lshr_b32 s54, s{idreg}, 3
          s_lshl_b32 s53, s53, 1
          s_lshr_b32 s55, s54, 4
          s_add_u32 s27, s53, s55
          s_and_b32 s47, s54, 15""")


def att(a, pfx, done, idreg=None):
    SA, SB, P, O, NM, Q, KV = 2, 18, 34, 42, 58, 74, 82
    VL, VD, T, VK = 114, 115, 116, 120
    sW, sH, sKV, sM, sQ = 26, 27, 48, 49, 50
    NT, NW = 64, 32
    a(f"""s_lshl_b32 s54, s47, 2
          s_and_b32 s55, s{sW}, 3
          s_add_u32 s57, s54, s55
          s_lshl_b32 s53, s{sH}, 6
          s_add_u32 s53, s53, s57
          s_lshl_b32 s{sQ}, s53, 11
          s_lshl_b32 s{sKV}, s{sH}, 18
          s_add_u32 s{sKV}, s{sKV}, {KVF}
          s_mov_b32 s58, s{sKV}
          s_lshl_b32 s{sM}, s{sW}, 11
          s_lshr_b32 s53, s{sW}, 2
          s_lshl_b32 s53, s53, 13
          v_lshlrev_b32 v{VL}, 4, v1
          v_add_u32 v{VD}, s{sM}, v{VL}
          v_add_u32 v{VK}, s53, v{VL}""")
    touch = {}
    if idreg is not None:
        srd(a, 28, P_W2, S * F * 2)
        srd(a, 32, P_WO, D * D * 2)
        a(f"""s_lshr_b32 s53, s{idreg}, 3
              s_lshl_b32 s53, s53, 3
              s_add_u32 s53, s53, s{sW}
              s_mul_i32 s54, s53, 7
              s_bfe_u32 s51, s{idreg}, 0x20001
              s_lshl_b32 s51, s51, 10
              s_and_b32 s52, s{idreg}, 1
              s_mul_i32 s52, s52, 384
              v_add_u32 v121, s54, v1
              v_and_b32 v122, 3, v121
              v_lshrrev_b32 v123, 2, v121
              v_mul_u32_u24 v123, 896, v123
              v_lshl_add_u32 v122, v122, 7, v123
              v_and_b32 v123, 7, v121
              v_lshrrev_b32 v121, 3, v121
              v_lshlrev_b32 v121, 12, v121
              v_lshl_add_u32 v121, v123, 7, v121
              s_mov_b32 exec_lo, 0xffffff80
              v_mov_b32 v121, {OOB}
              v_mov_b32 v122, {OOB}
              s_mov_b32 exec_lo, -1""")
        for i in range(8):
            touch[1 + i] = f"buffer_load_dword v123, v121, s[28:31], s51 offen\ns_add_u32 s51, s51, {224 * 4096}"
        touch[10] = "buffer_load_dword v123, v122, s[32:35], s52 offen"
    att.prologue_hook(a)
    PR(a, 0)
    a(f"buffer_load_dwordx4 {vr(Q, 4)}, v{VL}, s[36:39], s{sQ} offen {SC}")
    a(f"buffer_load_dwordx4 {vr(Q + 4, 4)}, v{VL}, s[36:39], s{sQ} offen offset:1024 {SC}")

    def dma(st, j):
        if j == 0:
            a(f"s_add_u32 m0, s{sM}, {(st % 4) * 16384}")
        a(f"buffer_load_dwordx4 v{VD}, s[36:39], s{sKV} offen offset:{1024 * j} {SC} lds")
        if j == 1:
            a(f"s_add_u32 s{sKV}, s{sKV}, 16384")

    def rd(dst, t, part):
        return f"ds_read_b128 {vr(dst, 4)}, v{VK} offset:{((t // 2) % 4) * 16384 + (t % 2) * 4096 + part * 1024}"

    for st in range(3):
        dma(st, 0); dma(st, 1)
    a("s_waitcnt vmcnt(2)\ns_barrier")
    PR(a, 1)
    k1 = KV + 16
    a(f"ds_read_b128 {vr(P, 4)}, v{VL}\nds_read_b128 {vr(P + 4, 4)}, v{VL} offset:1024")
    a(rd(k1, 0, 0)); a(rd(k1 + 8, 0, 1))
    a(rd(KV, 1, 0)); a(rd(KV + 8, 1, 1)); a(rd(KV + 12, 0, 2))
    a(f"""s_waitcnt lgkmcnt(5)
          {MF} {vr(SA, 16)}, {vr(P, 4)}, {vr(Q, 4)}, 0
          {MF} {vr(SA, 16)}, {vr(P + 4, 4)}, {vr(Q + 4, 4)}, {vr(SA, 16)}""")
    a(f"v_max3_f32 v{T}, v{SA}, v{SA + 1}, v{SA + 2}")
    a(f"v_max3_f32 v{T + 1}, v{SA + 3}, v{SA + 4}, v{SA + 5}")
    for r in range(6, 14, 4):
        a(f"v_max3_f32 v{T}, v{T}, v{SA + r}, v{SA + r + 1}")
        a(f"v_max3_f32 v{T + 1}, v{T + 1}, v{SA + r + 2}, v{SA + r + 3}")
    a(f"""v_max3_f32 v{T}, v{T}, v{SA + 14}, v{SA + 15}
          v_max_f32 v{T}, v{T}, v{T + 1}
          v_mov_b32 v{T + 1}, v{T}
          v_permlane32_swap_b32 v{T}, v{T + 1}
          v_max_f32 v{T}, v{T}, v{T + 1}
          v_sub_f32 v{NM}, 0, v{T}""")
    for r in range(1, 16):
        a(f"v_mov_b32 v{NM + r}, v{NM}")
    a(f"""s_waitcnt lgkmcnt(0)
          {MF} {vr(SA, 16)}, {vr(k1, 4)}, {vr(Q, 4)}, {vr(NM, 16)}
          {MF} {vr(SA, 16)}, {vr(k1 + 8, 4)}, {vr(Q + 4, 4)}, {vr(SA, 16)}""")
    for t in range(NW):
        s, n = (SA, SB) if t % 2 == 0 else (SB, SA)
        kv, kn = KV + 16 * (t % 2), KV + 16 * ((t + 1) % 2)
        st = t // 2
        if t % 4 == 0:
            PR(a, 2 + t // 4)
        if t % 2 == 0 and t > 0:
            extra = (st - 1 in touch) + (st - 2 in touch)
            a(f"s_waitcnt vmcnt({2 + extra if st + 2 < 16 else 0})\ns_barrier")

        def e(*ii):
            for i in ii:
                a(f"v_exp_f32 v{s + i}, v{s + i}")

        def c(i):
            a(f"v_cvt_pk_bf16_f32 v{P + i}, v{s + 2 * i}, v{s + 2 * i + 1}")

        if t + 1 < NW:
            a(f"{MF} {vr(n, 16)}, {vr(kv, 4)}, {vr(Q, 4)}, {vr(NM, 16)}")
        if t + 2 < NW:
            a(rd(kn, t + 2, 0))
        e(0, 1, 2); c(0); e(3, 4); c(1)
        if t > 0:
            a(f"{MF} {vr(O, 16)}, {vr(kv + 4, 4)}, {vr(P + 4, 4)}, {vr(O, 16)}")
        if t + 2 < NW:
            a(rd(kn + 8, t + 2, 1))
        e(5, 6); c(2); e(7, 8); c(3)
        if t + 1 < NW:
            a(f"{MF} {vr(n, 16)}, {vr(kv + 8, 4)}, {vr(Q + 4, 4)}, {vr(n, 16)}")
        a(rd(kn + 4, t, 3))
        if t + 1 < NW:
            a(rd(kn + 12, t + 1, 2))
        e(9, 10); c(4); e(11, 12); c(5)
        a(f"{MF} {vr(O, 16)}, {vr(kv + 12, 4)}, {vr(P, 4)}, {'0' if t == 0 else vr(O, 16)}")
        if st + 3 < 16:
            dma(st + 3, t % 2)
        if t % 2 == 1 and st in touch:
            a(touch[st])
        e(13, 14); c(6); e(15)
        a("s_waitcnt lgkmcnt(0)")
        c(7)
    kv = KV + 16 * (NW % 2)
    a(f"{MF} {vr(O, 16)}, {vr(kv + 4, 4)}, {vr(P + 4, 4)}, {vr(O, 16)}")
    PR(a, 10)
    a(f"""s_and_b32 s53, s{sW}, 3
          s_lshl_b32 s53, s53, 12
          s_add_u32 s53, s53, 65536
          v_add_u32 v{VK}, s53, v{VL}
          s_cmp_lt_u32 s{sW}, 4
          s_cbranch_scc1 {pfx}_lo
          s_nop 7""")
    for g in range(4):
        a(f"ds_write_b128 v{VK}, {vr(O + 4 * g, 4)} offset:{1024 * g}")
    a(f"s_waitcnt lgkmcnt(0)\ns_barrier\ns_branch {done}")
    a.label(f"{pfx}_lo")
    a("s_barrier")
    for g in range(4):
        a(f"ds_read_b128 {vr(SA + 4 * g, 4)}, v{VK} offset:{1024 * g}")
    a("s_waitcnt lgkmcnt(0)")
    for r in range(0, 16, 2):
        a(f"v_pk_add_f32 {vr(O + r, 2)}, {vr(O + r, 2)}, {vr(SA + r, 2)}")
    a.label(f"{pfx}_fin")
    a(f"""s_lshl_b32 s53, s{sH}, 17
          s_lshl_b32 s54, s57, 9
          s_add_u32 s53, s53, s54
          s_add_u32 s53, s53, {OF}
          s_add_u32 s54, s53, 65536
          v_and_b32 v{T + 2}, 31, v1
          v_lshrrev_b32 v{T + 3}, 5, v1
          v_lshlrev_b32 v{T + 2}, 4, v{T + 2}
          v_lshl_add_u32 v{T + 2}, v{T + 3}, 15, v{T + 2}
          s_nop 1
          v_mov_b32 v{T}, v{O + 12}
          v_mov_b32 v{T + 1}, v{O + 12}
          v_permlane32_swap_b32 v{T}, v{T + 1}""")
    a("s_mov_b32 exec_lo, 0")
    for r in range(12, 16):
        a(f"v_mov_b32 v{O + r}, 0")
    a(f"""s_mov_b64 exec, -1
          s_mov_b32 s59, {f32(2.0 ** 100)}
          v_add_f32_e64 v{T}, abs(v{O}), v{T + 1}""")
    for r in range(1, 16):
        a(f"v_add_f32_e64 v{T}, abs(v{O + r}), v{T}")
    a(f"""v_cmp_nlt_f32_e64 vcc, v{T}, s59
          v_rcp_f32 v{T}, v{T + 1}
          s_cmp_eq_u32 s58, 0
          s_cbranch_scc1 {pfx}_store
          s_cbranch_vccnz {pfx}_slow""")
    a.label(f"{pfx}_store")
    for r in range(16):
        a(f"v_mul_f32 v{O + r}, v{O + r}, v{T}")
    for r in range(8):
        a(f"v_cvt_pk_bf16_f32 v{P + r}, v{O + 2 * r}, v{O + 2 * r + 1}")
    a(f"""buffer_store_dwordx4 {vr(P, 4)}, v{T + 2}, s[36:39], s53 offen {SC}
          buffer_store_dwordx4 {vr(P + 4, 4)}, v{T + 2}, s[36:39], s54 offen {SC}
          """)
    PR(a, 11)
    a(f"s_branch {done}")
    a.label(f"{pfx}_slow")
    a(f"""v_mov_b32 v{T}, 0xff800000
          s_mov_b32 s60, s58
          s_mov_b32 s61, {NT}""")
    a.label(f"{pfx}_slow1")
    a(f"""buffer_load_dwordx4 {vr(KV, 4)}, v{VL}, s[36:39], s60 offen {SC}
          buffer_load_dwordx4 {vr(KV + 4, 4)}, v{VL}, s[36:39], s60 offen offset:1024 {SC}
          s_waitcnt vmcnt(0)
          {MF} {vr(SA, 16)}, {vr(KV, 4)}, {vr(Q, 4)}, 0
          {MF} {vr(SA, 16)}, {vr(KV + 4, 4)}, {vr(Q + 4, 4)}, {vr(SA, 16)}""")
    for r in range(0, 16, 2):
        a(f"v_max3_f32 v{T}, v{T}, v{SA + r}, v{SA + r + 1}")
    a(f"""s_add_u32 s60, s60, 4096
          s_sub_u32 s61, s61, 1
          s_cmp_lg_u32 s61, 0
          s_cbranch_scc1 {pfx}_slow1
          v_mov_b32 v{T + 1}, v{T}
          v_permlane32_swap_b32 v{T}, v{T + 1}
          v_max_f32 v{T}, v{T}, v{T + 1}
          v_sub_f32 v{NM}, 0, v{T}""")
    for r in range(1, 16):
        a(f"v_mov_b32 v{NM + r}, v{NM}")
    for r in range(16):
        a(f"v_mov_b32 v{O + r}, 0")
    a(f"""s_mov_b32 s60, s58
          s_mov_b32 s61, {NT}""")
    a.label(f"{pfx}_slow2")
    for i in range(4):
        a(f"buffer_load_dwordx4 {vr(KV + 4 * i, 4)}, v{VL}, s[36:39], s60 offen offset:{1024 * i} {SC}")
    a(f"""s_waitcnt vmcnt(0)
          {MF} {vr(SA, 16)}, {vr(KV, 4)}, {vr(Q, 4)}, {vr(NM, 16)}
          {MF} {vr(SA, 16)}, {vr(KV + 4, 4)}, {vr(Q + 4, 4)}, {vr(SA, 16)}""")
    for r in range(16):
        a(f"v_exp_f32 v{SA + r}, v{SA + r}")
    for r in range(8):
        a(f"v_cvt_pk_bf16_f32 v{P + r}, v{SA + 2 * r}, v{SA + 2 * r + 1}")
    a(f"""{MF} {vr(O, 16)}, {vr(KV + 8, 4)}, {vr(P, 4)}, {vr(O, 16)}
          {MF} {vr(O, 16)}, {vr(KV + 12, 4)}, {vr(P + 4, 4)}, {vr(O, 16)}
          s_add_u32 s60, s60, 4096
          s_sub_u32 s61, s61, 1
          s_cmp_lg_u32 s61, 0
          s_cbranch_scc1 {pfx}_slow2
          s_mov_b32 s58, 0
          s_nop 7
          s_branch {pfx}_fin""")


att.prologue_hook = lambda a: None


G_ACC, G_DR, G_TR = 64, 2, 34
RING = 4


def set_ring(n):
    global RING
    RING = n


class Seg:
    def __init__(self, n, tsrd, vt, st, tstep, vd, sd, dstep, va, pofs, tr_is_a):
        self.__dict__.update(locals())


def gloop(a, segs, sM, hooks=None):
    steps = [(sg, i) for sg in segs for i in range(sg.n)]
    N = len(steps)
    hooks = hooks or {}

    def loads(k):
        sg, _ = steps[k]
        d = G_DR + 8 * (k % RING)
        return [f"s_add_u32 m0, s{sM}, {(k % RING) * 2048}",
                f"buffer_load_dwordx4 {vr(d, 4)}, v{sg.vd}, s[36:39], s{sg.sd} offen {SC}",
                f"buffer_load_dwordx4 v{sg.vt}, {sr(sg.tsrd, 4)}, s{sg.st} offen lds",
                f"buffer_load_dwordx4 {vr(d + 4, 4)}, v{sg.vd + 1}, s[36:39], s{sg.sd} offen {SC}",
                f"buffer_load_dwordx4 v{sg.vt + 1}, {sr(sg.tsrd, 4)}, s{sg.st} offen offset:1024 lds",
                f"s_add_u32 s{sg.st}, s{sg.st}, {sg.tstep}",
                f"s_add_u32 s{sg.sd}, s{sg.sd}, {sg.dstep}"]

    def treads(k):
        sg, _ = steps[k]
        for ti in range(2):
            for p in range(2):
                b = G_TR + 8 * (k & 1) + 4 * ti + 2 * p
                a(f"ds_read_b64_tr_b16 {vr(b, 2)}, v{sg.va + ti} offset:{(k % RING) * 2048 + p * sg.pofs}")

    PR(a, 0)
    for k in range(min(RING - 1, N)):
        for x in loads(k):
            a(x)
    a(f"s_waitcnt vmcnt({4 * (min(RING - 1, N) - 1)})")
    treads(0)
    for k in range(N):
        if k in hooks:
            hooks[k]()
        sg, _ = steps[k]
        mf = []
        for ti, di in ((0, 0), (0, 1), (1, 1), (1, 0)):
            t = vr(G_TR + 8 * (k & 1) + 4 * ti, 4)
            d = vr(G_DR + 8 * (k % RING) + 4 * di, 4)
            m, n = (ti, di) if sg.tr_is_a else (di, ti)
            acc = vr(G_ACC + 16 * (2 * m + n), 16)
            cin = "0" if k == 0 else acc
            mf.append(f"{MF} {acc}, {t}, {d}, {cin}" if sg.tr_is_a else f"{MF} {acc}, {d}, {t}, {cin}")
        ld = loads(k + RING - 1) if k + RING - 1 < N else []
        a("s_waitcnt lgkmcnt(0)")
        if k % 4 == 0:
            PR(a, 1 + k // 4)
        a(mf[0])
        for x in ld[:3]:
            a(x)
        a(mf[1])
        for x in ld[3:]:
            a(x)
        a(mf[2])
        if k + 1 < N:
            a(f"s_waitcnt vmcnt({4 * (min(k + RING, N) - (k + 2))})")
            treads(k + 1)
        a(mf[3])


def g_addr_tr(a, vt, va, stride, hi_rows, sM, last_dup=False):
    a(f"""v_lshrrev_b32 v62, 3, v1
          v_and_b32 v63, 7, v1
          v_bfe_u32 v{vt}, v1, 4, 1
          v_lshlrev_b32 v{vt}, 2, v{vt}
          v_xor_b32 v63, v63, v{vt}""")
    if last_dup:
        a("v_min_u32 v63, 6, v63")
    a(f"""v_mul_u32_u24 v62, {stride}, v62
          v_lshl_add_u32 v{vt}, v63, 4, v62
          v_add_u32 v{vt + 1}, {8 * stride - 1024}, v{vt}""")
    if va is not None:
        a(f"""v_lshrrev_b32 v62, 5, v1
              v_mul_u32_u24 v62, {hi_rows}, v62
              v_bfe_u32 v63, v1, 2, 2
              v_add_u32 v62, v62, v63
              v_lshlrev_b32 v62, 7, v62
              v_bfe_u32 v63, v1, 3, 1
              v_lshl_add_u32 v62, v63, 6, v62
              v_bfe_u32 v63, v1, 4, 1
              v_lshl_add_u32 v62, v63, 5, v62
              v_and_b32 v63, 3, v1
              v_lshl_add_u32 v62, v63, 3, v62
              v_add_u32 v{va}, s{sM}, v62
              v_xor_b32 v{va + 1}, 64, v{va}""")


def g_addr_dir(a, vd, hi_stride, mask24):
    a(f"""v_lshrrev_b32 v62, 5, v1
          v_mul_u32_u24 v62, {hi_stride}, v62
          v_and_b32 v63, 31, v1
          v_lshl_add_u32 v{vd}, v63, 4, v62
          v_add_u32 v{vd + 1}, 512, v{vd}""")
    if mask24:
        a(f"""s_mov_b32 exec_lo, 0xff000000
              s_mov_b32 exec_hi, 0xff000000
              v_mov_b32 v{vd + 1}, {OOB}
              s_mov_b64 exec, -1""")


def g_reduce(a, pfx, sW, RES):
    a(f"""v_lshlrev_b32 v62, 4, v1
          v_add_u32 v62, 32768, v62
          s_mul_i32 s53, s{sW}, 12288
          v_add_u32 v63, s53, v62""")
    for w in range(1, 4):
        a(f"s_cmp_eq_u32 s{sW}, {w}\ns_cbranch_scc1 {pfx}_r{w}")
    for w in range(4):
        if w:
            a.label(f"{pfx}_r{w}")
        a("s_nop 7")
        for q in range(4):
            if q == w:
                continue
            for g in range(4):
                a(f"ds_write_b128 v62, {vr(G_ACC + 16 * q + 4 * g, 4)} offset:{q * 12288 + ((w - q - 1) % 4) * 4096 + g * 1024}")
        for r in range(16):
            a(f"v_mov_b32 v{RES + r}, v{G_ACC + 16 * w + r}")
        if w < 3:
            a(f"s_branch {pfx}_rj")
    a.label(f"{pfx}_rj")
    a("s_waitcnt lgkmcnt(0)\ns_barrier")
    for sl in range(3):
        for g in range(4):
            a(f"ds_read_b128 {vr(G_ACC + 16 * sl + 4 * g, 4)}, v63 offset:{sl * 4096 + g * 1024}")
    for sl in range(3):
        a(f"s_waitcnt lgkmcnt({8 - 4 * sl})")
        for r in range(0, 16, 2):
            a(f"v_pk_add_f32 {vr(RES + r, 2)}, {vr(RES + r, 2)}, {vr(G_ACC + 16 * sl + r, 2)}")


def g1_ids(a, idreg):
    a(f"""s_lshr_b32 s54, s{idreg}, 3
          s_and_b32 s53, s{idreg}, 1
          s_lshl_b32 s53, s53, 2
          s_and_b32 s51, s54, 3
          s_add_u32 s51, s51, s53
          s_bfe_u32 s53, s{idreg}, 0x20001
          s_mul_i32 s53, s53, 7
          s_lshr_b32 s52, s54, 2
          s_add_u32 s50, s52, s53
          s_cmp_ge_u32 s54, 28""")


def g1(a, pfx, go=None):
    sW, sM, sT, sD, sF0, sD0 = 26, 27, 48, 49, 50, 51
    VT, VD, VA, VB = 50, 52, 54, 56
    a(f"""s_lshl_b32 s{sM}, s{sW}, 13
          s_mul_i32 s{sT}, s{sW}, {16 * 3584}
          s_lshl_b32 s53, s{sF0}, 7
          s_add_u32 s{sT}, s{sT}, s53
          s_mul_i32 s{sD}, s{sW}, 14336
          s_mul_i32 s53, s{sD0}, 896
          s_add_u32 s{sD}, s{sD}, s53
          s_add_u32 s{sD}, s{sD}, {HT}""")
    g_addr_tr(a, VT, VA, 3584, 8, sM)
    g_addr_dir(a, VD, 7168, True)
    a("s_waitcnt lgkmcnt(0)")
    srd(a, 28, P_W1, S * F * 2)
    srd(a, 32, P_B1, F * 2)
    srd(a, 36, P_WS, WS_BYTES)
    if go:
        go(a)
    gloop(a, [Seg(32, 28, VT, sT, 64 * 3584, VD, sD, 4 * 14336, VA, 512, True)], sM)
    a(f"""s_lshr_b32 s55, s{sW}, 1
          s_lshl_b32 s53, s{sF0}, 1
          s_add_u32 s55, s55, s53
          s_lshl_b32 s53, s55, 6
          v_lshrrev_b32 v{VB}, 5, v1
          v_lshlrev_b32 v{VB + 1}, 3, v{VB}""")
    for g in range(4):
        a(f"buffer_load_dwordx2 {vr(2 + 2 * g, 2)}, v{VB + 1}, s[32:35], s53 offen offset:{16 * g}")
    RES = 18
    PR(a, 10)
    a("s_setprio 2")
    g_reduce(a, pfx, sW, RES)
    PR(a, 11)
    a(f"""s_mul_i32 s55, s55, {2 * 14336}
          s_mul_i32 s53, s{sD0}, 896
          s_add_u32 s55, s55, s53
          s_add_u32 s55, s55, {UF}
          s_add_u32 s54, s55, 14336
          s_and_b32 s53, s{sW}, 1
          s_cmp_eq_u32 s53, 0
          s_cselect_b64 exec, -1, 0
          v_mov_b32 v{VD + 1}, v{VD}
          s_mov_b64 exec, -1
          s_mov_b32 s56, {f32(-2 * 1.4426950408889634 * 0.7978845608028654 * 0.044715)}
          v_mov_b32 v34, {f32(-2 * 1.4426950408889634 * 0.7978845608028654)}
          s_waitcnt vmcnt(0)""")
    for r in range(16):
        b = 2 + r // 2
        a(f"v_lshlrev_b32 v{64 + r}, 16, v{b}" if r % 2 == 0 else f"v_and_b32 v{64 + r}, 0xffff0000, v{b}")
    for r in range(16):
        a(f"v_add_f32 v{RES + r}, v{RES + r}, v{64 + r}")
    for r in range(16):
        a(f"v_mul_f32 v{64 + r}, v{RES + r}, v{RES + r}")
    for r in range(16):
        a(f"v_fma_f32 v{64 + r}, v{64 + r}, s56, v34")
    for r in range(16):
        a(f"v_mul_f32 v{64 + r}, v{64 + r}, v{RES + r}")
    for r in range(16):
        a(f"v_exp_f32 v{64 + r}, v{64 + r}")
    for r in range(16):
        a(f"v_add_f32 v{64 + r}, 1.0, v{64 + r}")
    for r in range(16):
        a(f"v_rcp_f32 v{64 + r}, v{64 + r}")
    for r in range(16):
        a(f"v_mul_f32 v{64 + r}, v{64 + r}, v{RES + r}")
    for r in range(8):
        a(f"v_cvt_pk_bf16_f32 v{2 + r}, v{64 + 2 * r}, v{65 + 2 * r}")
    a(f"""buffer_store_dwordx4 v[2:5], v{VD + 1}, s[36:39], s55 offen {SC}
          buffer_store_dwordx4 v[6:9], v{VD + 1}, s[36:39], s54 offen {SC}""")


def fin_ids(a, idreg):
    a(f"""s_lshr_b32 s54, s{idreg}, 3
          s_and_b32 s53, s{idreg}, 1
          s_lshl_b32 s53, s53, 2
          s_and_b32 s51, s54, 3
          s_add_u32 s51, s51, s53
          s_bfe_u32 s53, s{idreg}, 0x20001
          s_lshl_b32 s53, s53, 3
          s_lshr_b32 s54, s54, 2
          s_add_u32 s50, s54, s53""")


def fin(a, pfx, go=None, go2=None):
    sW, sM, sT, sD, sS0, sD0, sT2, sD2 = 26, 27, 48, 49, 50, 51, 52, 58
    VT, VD, VA, VT2, VD2 = 50, 52, 54, 56, 58
    a(f"""s_lshl_b32 s{sM}, s{sW}, 13
          s_mul_i32 s{sT}, s{sW}, {16 * 4096}
          s_lshl_b32 s53, s{sS0}, 7
          s_add_u32 s{sT}, s{sT}, s53
          s_mul_i32 s{sD}, s{sW}, 14336
          s_mul_i32 s53, s{sD0}, 896
          s_add_u32 s{sD}, s{sD}, s53
          s_add_u32 s{sD}, s{sD}, {UF}
          s_lshr_b32 s53, s{sW}, 1
          s_mul_i32 s53, s53, 28
          s_and_b32 s54, s{sW}, 1
          s_lshl_b32 s54, s54, 4
          s_add_u32 s53, s53, s54
          s_mul_i32 s{sT2}, s53, 896
          s_mul_i32 s53, s{sD0}, 112
          s_add_u32 s{sT2}, s{sT2}, s53
          s_lshl_b32 s{sD2}, s{sW}, 16
          s_lshl_b32 s53, s{sS0}, 10
          s_add_u32 s{sD2}, s{sD2}, s53
          s_add_u32 s{sD2}, s{sD2}, {OF}""")
    g_addr_tr(a, VT, VA, 4096, 4, sM)
    g_addr_dir(a, VD, 7168, True)
    g_addr_tr(a, VT2, None, 896, 4, sM, last_dup=True)
    g_addr_dir(a, VD2, 32768, False)
    a("s_waitcnt lgkmcnt(0)")
    srd(a, 28, P_W2, S * F * 2)
    srd(a, 32, P_WO, D * D * 2)
    srd(a, 36, P_WS, WS_BYTES)
    srd(a, 40, P_X, S * D * 2)
    srd(a, 44, P_B2, S * 2)
    if go:
        go(a)
    gloop(a, [Seg(28, 28, VT, sT, 64 * 4096, VD, sD, 4 * 14336, VA, 1024, False),
              Seg(8, 32, VT2, sT2, 56 * 896, VD2, sD2, 8 * 32768, VA, 1024, True)], sM,
          hooks={28 - RING + 1: (lambda: go2(a))} if go2 else None)
    a(f"""s_and_b32 s53, s{sW}, 1
          s_lshl_b32 s54, s{sS0}, 1
          s_add_u32 s53, s53, s54
          s_lshl_b32 s59, s53, 6
          s_mul_i32 s60, s53, {32 * 896}
          s_mul_i32 s53, s{sD0}, 112
          s_add_u32 s60, s60, s53
          s_lshr_b32 s53, s{sW}, 1
          s_lshl_b32 s54, s53, 6
          s_add_u32 s60, s60, s54
          v_and_b32 v56, 31, v1
          v_lshrrev_b32 v57, 5, v1
          v_lshlrev_b32 v58, 1, v56
          v_mul_u32_u24 v56, 896, v56
          v_lshl_add_u32 v59, v57, 4, v56
          v_lshl_add_u32 v56, v57, 3, v56
          v_add_u32 v60, 32, v59
          s_cmp_eq_u32 s53, 1
          s_cselect_b32 exec_hi, -1, 0
          s_mov_b32 exec_lo, 0
          v_mov_b32 v60, {OOB}
          s_mov_b64 exec, -1""")
    for g in range(4):
        a(f"buffer_load_dwordx2 {vr(2 + 2 * g, 2)}, v56, s[40:43], s60 offen offset:{16 * g}")
    a("buffer_load_ushort v10, v58, s[44:47], s59 offen")
    RES = 18
    PR(a, 10)
    a("s_setprio 2")
    g_reduce(a, pfx, sW, RES)
    PR(a, 11)
    srd(a, 40, P_OUT, S * D * 2)
    a("s_waitcnt vmcnt(0)\nv_lshlrev_b32 v10, 16, v10")
    for r in range(16):
        b = 2 + r // 2
        a(f"v_lshlrev_b32 v{64 + r}, 16, v{b}" if r % 2 == 0 else f"v_and_b32 v{64 + r}, 0xffff0000, v{b}")
    for r in range(16):
        a(f"v_add_f32 v{RES + r}, v{RES + r}, v10")
    for r in range(16):
        a(f"v_add_f32 v{RES + r}, v{RES + r}, v{64 + r}")
    for r in range(8):
        a(f"v_cvt_pk_bf16_f32 v{2 + r}, v{RES + 2 * r}, v{RES + 2 * r + 1}")
    a("""v_permlane32_swap_b32 v2, v4
         v_permlane32_swap_b32 v3, v5
         v_permlane32_swap_b32 v6, v8
         v_permlane32_swap_b32 v7, v9
         buffer_store_dwordx4 v[2:5], v59, s[40:43], s60 offen
         buffer_store_dwordx4 v[6:9], v60, s[40:43], s60 offen""")


FL_H, FL_Q, FL_U, FL_O = FLAGS, FLAGS + 32768, FLAGS + 65536, FLAGS + 98304
VN, SPIN = 40, 200000


def spin(a, name, load, test):
    a(f"s_mov_b32 s45, {SPIN}")
    a.label(name)
    a(load)
    a("s_waitcnt vmcnt(0)")
    a(test)
    a(f"""s_and_b64 exec, exec, vcc
          s_cbranch_execz {name}_ok
          s_sleep 2
          s_sub_u32 s45, s45, 1
          s_cbranch_scc0 {name}""")
    a.label(f"{name}_ok")
    a("s_mov_b64 exec, -1")


def put_tag(a):
    srd(a, 40, P_DBG, 256)
    a(f"""s_memrealtime s[46:47]
          v_mov_b32 v{VN + 1}, 0
          s_waitcnt lgkmcnt(0)
          s_or_b32 s46, s46, 1
          v_mov_b32 v{VN}, s46
          s_mov_b64 exec, 1
          buffer_store_dword v{VN}, v{VN + 1}, s[40:43], 0 offen sc1
          s_mov_b64 exec, -1""")


def get_tag(a, name):
    srd(a, 40, P_DBG, 256)
    a(f"v_mov_b32 v{VN + 1}, 0")
    spin(a, name, f"buffer_load_dword v{VN}, v{VN + 1}, s[40:43], 0 offen sc1", f"v_cmp_eq_u32 vcc, 0, v{VN}")


def publish(a, sreg):
    a(f"""v_mov_b32 v{VN + 1}, 0
          s_mov_b64 exec, 1
          buffer_store_dword v{VN}, v{VN + 1}, s[36:39], s{sreg} offen sc1
          s_mov_b64 exec, -1""")


def wait_flags(a, name, vaddr, sreg):
    spin(a, name, f"buffer_load_dword v{VN + 2}, v{vaddr}, s[36:39], s{sreg} offen sc1", f"v_cmp_ne_u32 vcc, v{VN + 2}, v{VN}")


def touch_rows(a, base, sDT, sQ, nshare, nrows):
    a(f"""v_mul_u32_u24 v3, 9363, v1
          v_lshrrev_b32 v3, 16, v3
          v_mul_u32_u24 v4, 7, v3
          v_sub_u32 v4, v1, v4
          v_mul_u32_u24 v3, {nshare * 7168}, v3
          v_lshl_add_u32 v3, v4, 7, v3
          s_mov_b32 exec_lo, 0
          s_mov_b32 exec_hi, 0xff000000
          v_mov_b32 v3, {OOB}
          s_mov_b64 exec, -1
          s_mul_i32 s53, s{sQ}, 7168
          s_mul_i32 s54, s{sDT}, 896
          s_add_u32 s53, s53, s54
          s_add_u32 s53, s53, {base}""")
    n = -(-nrows // (8 * nshare))
    return [f"buffer_load_dword v5, v3, s[36:39], s53 offen {SC}\ns_add_u32 s53, s53, {8 * nshare * 7168}" for _ in range(n)]
```

```python
import sys
from asmlib import Asm
import comps as C

NAME = "parallel_sum__softmax_full_mha__mixer_token_mlp__prompt"
REF = f"cdna_kernels/{NAME}.s.ref"


def kernel(name, body, nv=128):
    a = Asm()
    body(a)
    lines = a.finish()
    txt = f".globl {name}\n.p2align 8\n.type {name},@function\n{name}:\n"
    txt += "\n".join(("" if ln.endswith(":") else "    ") + ln for ln in lines) + "\n"
    kd = f""".p2align 6
.amdhsa_kernel {name}
  .amdhsa_next_free_vgpr {nv}
  .amdhsa_next_free_sgpr {100 if STAMP else 72}
  .amdhsa_accum_offset {nv}
  .amdhsa_group_segment_fixed_size 0
  .amdhsa_kernarg_size 88
  .amdhsa_user_sgpr_count 2
  .amdhsa_user_sgpr_kernarg_segment_ptr 1
  .amdhsa_system_sgpr_workgroup_id_x 1
.end_amdhsa_kernel
"""
    return txt, kd


STAMP = False
TS = 14 << 20


PHASE = [""]
SLOTS = {}
WANT = {"qkv": (0, 1, 2, 4, 7, 8, 9), "att": (0, 1, 2, 4, 6, 8, 10, 11), "ln": (0, 1, 2, 3), "g1": (0, 1, 3, 5, 7, 10, 11),
        "fin": (0, 1, 3, 5, 7, 8, 9, 10, 11), "ha": tuple(range(8)), "hb": tuple(range(12))}


def stamp_begin(a):
    if STAMP:
        a("s_memrealtime s[64:65]\ns_memtime s[66:67]")
        for i in range(28):
            a(f"s_mov_b32 s{72 + i}, 0")


def probe(a, i):
    ph = PHASE[0]
    if STAMP and i in WANT[ph]:
        role = "a" if ph in ("qkv", "att", "ha") else "b"
        d = SLOTS.setdefault(role, {})
        slot = d.setdefault((ph, i), len(d))
        assert slot < 28
        a(f"s_memrealtime s[70:71]\ns_waitcnt lgkmcnt(0)\ns_mov_b32 s{72 + slot}, s70")


C.probe = probe


def hp(a, ph, i):
    old = PHASE[0]
    PHASE[0] = ph
    probe(a, i)
    PHASE[0] = old


def stamp_end(a, kid):
    if STAMP:
        a(f"""s_waitcnt vmcnt(0) lgkmcnt(0)
              s_memrealtime s[68:69]
              s_memtime s[70:71]
              s_waitcnt lgkmcnt(0)
              s_sub_u32 s70, s70, s66""")
        C.srd(a, 36, C.P_WS, C.WS_BYTES)
        a(f"""s_lshl_b32 s53, s2, 10
              s_add_u32 s53, s53, {TS}
              v_lshrrev_b32 v2, 6, v0
              v_lshlrev_b32 v2, 7, v2
              v_mov_b32 v4, s64
              v_mov_b32 v5, s68
              v_mov_b32 v6, s70
              v_mov_b32 v7, 1""")
        for i in range(28):
            a(f"v_mov_b32 v{8 + i}, s{72 + i}")
        for i in range(8):
            a(f"buffer_store_dwordx4 v[{4 + 4 * i}:{7 + 4 * i}], v2, s[36:39], s53 offen offset:{16 * i}")


OPT = set()


def role_a(a):
    C.lane_wave(a)
    C.qkv_ids(a, 3)
    a("s_setprio 1\ns_cmp_ge_u32 s26, 4\ns_cbranch_scc1 a_help")
    PHASE[0] = "qkv"
    C.qkv(a, 3, "qkv", "a_pub")
    a.label("a_help")
    dma_w = C.qkv_wload(a)
    dma_w(0); dma_w(1)
    nt = 0
    if "notouch" not in OPT:
        C.qkv_touch(a, 3)
        nt = 1
    C.srd(a, 36, C.P_WS, C.WS_BYTES)
    for b in range(C.QKV_BARRIERS):
        if b < 7:
            a(f"s_waitcnt vmcnt({3 + nt if b < 2 else 3 if b < 6 else 0})")
        a("s_barrier")
        if b + 2 < 7:
            dma_w(b + 2)
    if "qkvonly" in OPT:
        a.label("a_pub")
        return
    a("s_cmp_lg_u32 s26, 4\ns_cbranch_scc1 a_pub")
    C.get_tag(a, "a_tag")
    hp(a, "ha", 0)
    a.label("a_pub")
    a(f"""s_lshl_b32 s53, s48, 4
          s_add_u32 s53, s53, s27
          s_lshl_b32 s53, s53, 7
          s_add_u32 s44, s53, {C.FL_Q}""")
    C.att_ids(a, 3)

    def hook(a):
        a("""s_waitcnt vmcnt(0)
             s_barrier
             s_cmp_lg_u32 s26, 4
             s_cbranch_scc1 a_go""")
        hp(a, "ha", 1)
        C.publish(a, 44)
        a(f"""v_lshrrev_b32 v3, 4, v1
              v_min_u32 v3, 2, v3
              v_sub_u32 v3, 2, v3
              v_lshlrev_b32 v3, 4, v3
              v_add_u32 v3, s27, v3
              v_mul_u32_u24 v3, 0x5556, v3
              v_lshrrev_b32 v3, 16, v3
              v_and_b32 v2, 15, v1
              s_mov_b32 exec_lo, 0
              v_mov_b32 v2, s47
              s_mov_b32 exec_lo, -1
              v_lshl_add_u32 v2, v3, 4, v2
              v_lshlrev_b32 v2, 7, v2
              s_mov_b32 s44, {C.FL_Q}
              s_mov_b32 exec_hi, 1""")
        C.wait_flags(a, "a_wq", 2, 44)
        a(f"v_readfirstlane_b32 s46, v{C.VN}")
        hp(a, "ha", 2)
        a.label("a_go")
        a("s_barrier")

    C.att.prologue_hook = hook
    PHASE[0] = "att"
    C.att(a, "att", "a_end", idreg=3)
    a.label("a_end")
    a(f"""s_waitcnt vmcnt(0)
          s_barrier
          s_cmp_lg_u32 s26, 4
          s_cbranch_scc1 a_exit
          s_lshl_b32 s53, s47, 4
          s_add_u32 s53, s53, s27
          s_lshl_b32 s53, s53, 7
          s_add_u32 s44, s53, {C.FL_O}
          v_mov_b32 v{C.VN}, s46""")
    C.publish(a, 44)
    a.label("a_exit")


def role_b(a):
    bar = lambda a: a("s_setprio 0\ns_barrier")
    C.lane_wave(a)
    a("""s_setprio 2
         s_bitcmp1_b32 s2, 3
         s_cbranch_scc1 b_noln
         s_cmp_lg_u32 s2, 0
         s_cbranch_scc1 b_ln
         s_cmp_lg_u32 s26, 4
         s_cbranch_scc1 b_ln
         s_waitcnt lgkmcnt(0)""")
    C.put_tag(a)
    a.label("b_ln")
    a("""s_lshr_b32 s3, s2, 4
         s_lshl_b32 s3, s3, 3
         s_and_b32 s53, s2, 7
         s_add_u32 s3, s3, s53""")
    PHASE[0] = "ln"
    C.ln(a, 3, "ln")
    a("s_cmp_lg_u32 s26, 4\ns_cbranch_scc1 b_ln2")
    C.get_tag(a, "b_tag0")
    a(f"s_lshl_b32 s44, s3, 7\ns_add_u32 s44, s44, {C.FL_H}")
    a.label("b_ln2")
    a("s_waitcnt vmcnt(0)\ns_barrier\ns_cmp_lg_u32 s26, 4\ns_cbranch_scc1 b_roles")
    hp(a, "hb", 1)
    C.publish(a, 44)
    a("s_branch b_help")
    a.label("b_noln")
    a("s_waitcnt lgkmcnt(0)")
    C.srd(a, 36, C.P_WS, C.WS_BYTES)
    a("s_cmp_lt_u32 s26, 4\ns_cbranch_scc1 b_g1\ns_cmp_ge_u32 s26, 6\ns_cbranch_scc1 exit0")
    C.get_tag(a, "b_tag1")
    a.label("b_roles")
    a("""s_cmp_ge_u32 s26, 6
         s_cbranch_scc1 exit0
         s_cmp_eq_u32 s26, 5
         s_cbranch_scc1 b_pref
         s_cmp_eq_u32 s26, 4
         s_cbranch_scc1 b_help""")
    a.label("b_g1")
    C.g1_ids(a, 2)
    a("s_cbranch_scc1 b_fin")
    PHASE[0] = "g1"
    C.g1(a, "g1", go=bar)
    a("s_waitcnt vmcnt(0)\ns_barrier")
    a.label("b_fin")
    C.fin_ids(a, 2)
    PHASE[0] = "fin"
    C.fin(a, "fin", go=bar, go2=lambda a: a("s_barrier"))
    a("s_branch b_exit")
    a.label("b_pref")
    C.srd(a, 28, C.P_W1, C.S * C.F * 2)
    a(f"""s_bfe_u32 s53, s2, 0x20001
          s_mul_i32 s53, s53, 896
          s_lshr_b32 s54, s2, 3
          s_mul_i32 s54, s54, {8 * 3584}
          s_add_u32 s49, s53, s54
          v_mul_u32_u24 v2, 9363, v1
          v_lshrrev_b32 v2, 16, v2
          v_mul_u32_u24 v3, 7, v2
          v_sub_u32 v3, v1, v3
          v_mul_u32_u24 v2, 3584, v2
          v_lshl_add_u32 v2, v3, 7, v2
          s_mov_b32 exec_hi, 0xffffff
          buffer_load_dword v4, v2, s[28:31], s49 offen
          s_add_u32 s49, s49, {256 * 3584}
          s_waitcnt vmcnt(0)
          buffer_load_dword v4, v2, s[28:31], s49 offen
          s_add_u32 s49, s49, {256 * 3584}""")
    C.g1_ids(a, 2)
    a("s_cbranch_scc1 b_pref1\ns_barrier")
    a.label("b_pref1")
    for i in range(6):
        a(f"s_waitcnt vmcnt(0)\nbuffer_load_dword v4, v2, s[28:31], s49 offen\ns_add_u32 s49, s49, {256 * 3584}")
    a("s_endpgm")
    a.label("b_help")
    a("s_setprio 3")
    C.g1_ids(a, 2)
    a("s_cbranch_scc1 b_h2")
    t = C.touch_rows(a, C.HT, 51, 52, 7, 256)
    a(f"v_lshlrev_b32 v2, 7, v1\ns_mov_b32 s44, {C.FL_H}")
    C.wait_flags(a, "b_wh0", 2, 44)
    a(f"s_mov_b32 s44, {C.FL_H + 8192}")
    C.wait_flags(a, "b_wh1", 2, 44)
    hp(a, "hb", 2)
    a("s_barrier")
    for x in t:
        a(x + "\ns_waitcnt vmcnt(1)")
    a(f"""s_lshl_b32 s44, s51, 5
          s_add_u32 s44, s44, s50
          s_lshl_b32 s44, s44, 7
          s_add_u32 s44, s44, {C.FL_U}""")
    hp(a, "hb", 3)
    a("s_barrier\ns_barrier")
    hp(a, "hb", 4)
    C.publish(a, 44)
    a.label("b_h2")
    C.fin_ids(a, 2)
    a("s_and_b32 s52, s50, 7")
    t = C.touch_rows(a, C.UF, 51, 52, 8, 224)
    a(f"""v_lshlrev_b32 v2, 7, v1
          s_lshl_b32 s44, s51, 12
          s_add_u32 s44, s44, {C.FL_U}
          s_mov_b64 exec, 0xfffffff""")
    C.wait_flags(a, "b_wu", 2, 44)
    hp(a, "hb", 5)
    a("s_barrier")
    for x in t:
        a(x + "\ns_waitcnt vmcnt(1)")
    a(f"""s_lshr_b32 s44, s50, 1
          s_lshl_b32 s44, s44, 11
          s_add_u32 s44, s44, {C.FL_O}
          v_lshrrev_b32 v3, 3, v1
          v_lshlrev_b32 v3, 15, v3
          v_and_b32 v4, 7, v1
          v_lshl_add_u32 v3, v4, 7, v3
          s_and_b32 s53, s51, 3
          s_lshl_b32 s53, s53, 19
          s_lshl_b32 s54, s50, 10
          s_add_u32 s53, s53, s54
          s_add_u32 s53, s53, {C.OF}""")
    hp(a, "hb", 6)
    a("s_mov_b64 exec, 0xffff")
    C.wait_flags(a, "b_wo", 2, 44)
    hp(a, "hb", 7)
    a(f"""buffer_load_dword v5, v3, s[36:39], s53 offen {C.SC}
          s_add_u32 s53, s53, {8 * 32768}
          buffer_load_dword v5, v3, s[36:39], s53 offen {C.SC}
          s_barrier""")
    a.label("b_exit")


def code_touch(a):
    a("""s_getpc_b64 s[26:27]""")
    a.label("k_pc")
    a(f"""s_sub_u32 s26, s26, k_pc-{NAME}_kernel
          s_subb_u32 s27, s27, 0
          s_lshr_b32 s3, s2, 3
          s_lshl_b32 s3, s3, 10
          s_add_u32 s26, s26, s3
          s_addc_u32 s27, s27, 0
          v_subrev_u32 v2, 504, v0
          v_lshlrev_b32 v2, 7, v2
          v_mov_b32 v3, s27
          v_add_co_u32 v2, vcc, s26, v2
          v_addc_co_u32 v3, vcc, 0, v3, vcc
          s_cmp_lt_u32 s3, k_end-{NAME}_kernel-1023
          s_cselect_b64 s[26:27], -1, 0
          v_cmp_le_u32 vcc, 504, v0
          s_and_b64 vcc, vcc, s[26:27]
          s_and_saveexec_b64 s[26:27], vcc
          s_cbranch_execz k_notouch
          global_load_dword v127, v[2:3], off""")
    a.label("k_notouch")
    a("s_mov_b64 exec, s[26:27]")


def kp(a):
    a("s_cmp_ge_u32 s2, 512\ns_cbranch_scc1 exit0")
    stamp_begin(a)
    C.load_args(a)
    if "nocode" not in OPT:
        code_touch(a)
    a("s_cmp_ge_u32 s2, 256\ns_cbranch_scc1 role_a")
    if "qkvonly" in OPT:
        a("s_waitcnt lgkmcnt(0)")
        SLOTS["b"] = {}
    else:
        role_b(a)
    stamp_end(a, 0)
    a.label("exit0")
    a("s_endpgm")
    a.label("role_a")
    a("s_sub_u32 s3, s2, 256")
    role_a(a)
    stamp_end(a, 0)
    a("s_endpgm")
    a(".p2align 10")
    a.label("k_end")


def build(path):
    head = [ln for ln in open(REF).read().split("\n") if ln.startswith(";") and "@launch" not in ln]
    out = "\n".join(head) + "\n; @launch grid=(512,1,1) block=(512,1,1) lds=81920\n"
    out += '.amdgcn_target "amdgcn-amd-amdhsa--gfx950"\n.text\n'
    t, kd = kernel(NAME + "_kernel", kp)
    out += t + '.section .rodata,"a"\n' + kd
    open(path, "w").write(out)
    if STAMP:
        import json
        json.dump({r: [f"{p}{i}" for (p, i) in d] for r, d in SLOTS.items()}, open(path + ".json", "w"))


if __name__ == "__main__":
    STAMP = "--stamp" in sys.argv
    OPT = {x[2:] for x in sys.argv if x.startswith("--")}
    C.OPT = OPT
    if "ring3" in OPT:
        C.set_ring(3)
    if "qkvonly" in OPT:
        WANT["qkv"] = tuple(range(13))
    sys.argv = [x for x in sys.argv if not x.startswith("--")]
    build(sys.argv[1] if len(sys.argv) > 1 else f"cdna_kernels/{NAME}.s")
```

```python
import sys
from asmlib import Asm
import comps as C

NAME = "parallel_sum__softmax_full_mha__mixer_token_mlp__prompt"
REF = f"cdna_kernels/{NAME}.s.ref"


def kernel(name, body, nv=128):
    a = Asm()
    body(a)
    lines = a.finish()
    txt = f".globl {name}\n.p2align 8\n.type {name},@function\n{name}:\n"
    txt += "\n".join(("" if ln.endswith(":") else "    ") + ln for ln in lines) + "\n"
    kd = f""".p2align 6
.amdhsa_kernel {name}
  .amdhsa_next_free_vgpr {nv}
  .amdhsa_next_free_sgpr {100 if STAMP or 'dbgp' in OPT else 72}
  .amdhsa_accum_offset {nv}
  .amdhsa_group_segment_fixed_size 0
  .amdhsa_kernarg_size 88
  .amdhsa_user_sgpr_count 2
  .amdhsa_user_sgpr_kernarg_segment_ptr 1
  .amdhsa_system_sgpr_workgroup_id_x 1
.end_amdhsa_kernel
"""
    return txt, kd


STAMP = False
TS = 14 << 20


PHASE = [""]
SAVE = []
OPT = set()
SLOTS = {}
WANT = {"qkv": (0, 1, 2, 4, 7, 8, 9), "att": (0, 1, 2, 4, 6, 8, 10, 11), "ln": (0, 1, 2, 3), "g1": (0, 1, 3, 5, 7, 10, 11),
        "fin": (0, 1, 3, 5, 7, 8, 9, 10, 11), "ha": tuple(range(8)), "hb": tuple(range(12))}


def stamp_begin(a):
    if "dbgp" in OPT:
        for i in range(16):
            a(f"s_mov_b32 s{72 + i}, 0")
    if STAMP:
        a("s_memrealtime s[64:65]\ns_memtime s[66:67]")
        for i in range(28):
            a(f"s_mov_b32 s{72 + i}, 0")


DBGP = {("qkv", 0): 1, ("qkv", 1): 2, ("qkv", 4): 3, ("qkv", 9): 4, ("att", 0): 5, ("att", 2): 6, ("att", 10): 7, ("ln", 1): 8, ("ln", 3): 9,
        ("g1", 0): 10, ("g1", 10): 11, ("fin", 0): 12, ("fin", 8): 13, ("fin", 11): 14, ("end", 0): 15}


def dbg_probe(a, key):
    if key in DBGP:
        a(f"""s_memrealtime s[70:71]
              s_mov_b32 s64, s22
              s_mov_b32 s65, s23
              s_mov_b32 s66, 256
              s_mov_b32 s67, 0x20000
              s_waitcnt lgkmcnt(0)
              v_mov_b32 v124, s70
              v_mov_b32 v125, {4 * DBGP[key]}
              s_mov_b64 s[68:69], exec
              s_mov_b64 exec, 1
              buffer_atomic_umax v124, v125, s[64:67], 0 offen
              s_mov_b64 exec, s[68:69]
              s_waitcnt vmcnt(63)""")


def probe(a, i):
    ph = PHASE[0]
    if "dbgp" in OPT:
        SAVE.append((ph, i))
        if (ph, i) in DBGP:
            a(f"s_memrealtime s[70:71]\ns_waitcnt lgkmcnt(0)\ns_mov_b32 s{72 + DBGP[(ph, i)]}, s70")
        return
    if STAMP and i in WANT[ph]:
        role = "a" if ph in ("qkv", "att", "ha") else "b"
        d = SLOTS.setdefault(role, {})
        slot = d.setdefault((ph, i), len(d))
        assert slot < 28
        a(f"s_memrealtime s[70:71]\ns_waitcnt lgkmcnt(0)\ns_mov_b32 s{72 + slot}, s70")


C.probe = probe


def hp(a, ph, i):
    old = PHASE[0]
    PHASE[0] = ph
    probe(a, i)
    PHASE[0] = old


def stamp_end(a, kid):
    if "dbgp" in OPT:
        a("s_waitcnt vmcnt(0)\ns_memrealtime s[70:71]\ns_waitcnt lgkmcnt(0)\ns_mov_b32 s87, s70")
        C.srd(a, 64, C.P_DBG, 256)
        a("v_lshlrev_b32 v2, 2, v1\nv_mov_b32 v3, 0")
        for i in range(1, 16):
            a(f"v_writelane_b32 v3, s{72 + i}, {i}")
        a("s_mov_b64 exec, 0xfffe\nbuffer_atomic_umax v3, v2, s[64:67], 0 offen")
    if STAMP:
        a(f"""s_waitcnt vmcnt(0) lgkmcnt(0)
              s_memrealtime s[68:69]
              s_memtime s[70:71]
              s_waitcnt lgkmcnt(0)
              s_sub_u32 s70, s70, s66""")
        C.srd(a, 36, C.P_WS, C.WS_BYTES)
        a(f"""s_lshl_b32 s53, s2, 10
              s_add_u32 s53, s53, {TS}
              v_lshrrev_b32 v2, 6, v0
              v_lshlrev_b32 v2, 7, v2
              v_mov_b32 v4, s64
              v_mov_b32 v5, s68
              v_mov_b32 v6, s70
              v_mov_b32 v7, 1""")
        for i in range(28):
            a(f"v_mov_b32 v{8 + i}, s{72 + i}")
        for i in range(8):
            a(f"buffer_store_dwordx4 v[{4 + 4 * i}:{7 + 4 * i}], v2, s[36:39], s53 offen offset:{16 * i}")


def role_a(a):
    C.lane_wave(a)
    C.qkv_ids(a, 3)
    a("s_setprio 1\ns_cmp_ge_u32 s26, 4\ns_cbranch_scc1 a_help")
    PHASE[0] = "qkv"
    C.qkv(a, 3, "qkv", "a_pub")
    a.label("a_help")
    dma_w = C.qkv_wload(a)
    dma_w(0); dma_w(1)
    nt = 0
    if "notouch" not in OPT:
        C.qkv_touch(a, 3)
        nt = 1
    C.srd(a, 36, C.P_WS, C.WS_BYTES)
    for b in range(C.QKV_BARRIERS):
        if b < 7:
            a(f"s_waitcnt vmcnt({3 + nt if b < 2 else 3 if b < 6 else 0})")
        a("s_barrier")
        if b + 2 < 7:
            dma_w(b + 2)
    if "qkvonly" in OPT:
        a.label("a_pub")
        return
    a("s_cmp_lg_u32 s26, 4\ns_cbranch_scc1 a_pub")
    C.get_tag(a, "a_tag")
    hp(a, "ha", 0)
    a.label("a_pub")
    a(f"""s_lshl_b32 s53, s48, 4
          s_add_u32 s53, s53, s27
          s_lshl_b32 s53, s53, 7
          s_add_u32 s44, s53, {C.FL_Q}""")
    C.att_ids(a, 3)

    def hook(a):
        a("""s_waitcnt vmcnt(0)
             s_barrier
             s_cmp_lg_u32 s26, 4
             s_cbranch_scc1 a_go""")
        hp(a, "ha", 1)
        C.publish(a, 44)
        a(f"""v_lshrrev_b32 v3, 4, v1
              v_min_u32 v3, 2, v3
              v_sub_u32 v3, 2, v3
              v_lshlrev_b32 v3, 4, v3
              v_add_u32 v3, s27, v3
              v_mul_u32_u24 v3, 0x5556, v3
              v_lshrrev_b32 v3, 16, v3
              v_and_b32 v2, 15, v1
              s_mov_b32 exec_lo, 0
              v_mov_b32 v2, s47
              s_mov_b32 exec_lo, -1
              v_lshl_add_u32 v2, v3, 4, v2
              v_lshlrev_b32 v2, 7, v2
              s_mov_b32 s44, {C.FL_Q}
              s_mov_b32 exec_hi, 1""")
        C.wait_flags(a, "a_wq", 2, 44)
        a(f"v_readfirstlane_b32 s46, v{C.VN}")
        hp(a, "ha", 2)
        a.label("a_go")
        a("s_barrier")

    C.att.prologue_hook = hook
    PHASE[0] = "att"
    C.att(a, "att", "a_end", idreg=3)
    a.label("a_end")
    a(f"""s_waitcnt vmcnt(0)
          s_barrier
          s_cmp_lg_u32 s26, 4
          s_cbranch_scc1 a_exit
          s_lshl_b32 s53, s47, 4
          s_add_u32 s53, s53, s27
          s_lshl_b32 s53, s53, 7
          s_add_u32 s44, s53, {C.FL_O}
          v_mov_b32 v{C.VN}, s46""")
    C.publish(a, 44)
    a.label("a_exit")


def role_b(a):
    bar = lambda a: a("s_setprio 0\ns_barrier")
    C.lane_wave(a)
    a("""s_setprio 2
         s_bitcmp1_b32 s2, 3
         s_cbranch_scc1 b_noln
         s_cmp_lg_u32 s2, 0
         s_cbranch_scc1 b_ln
         s_cmp_lg_u32 s26, 4
         s_cbranch_scc1 b_ln
         s_waitcnt lgkmcnt(0)""")
    C.put_tag(a)
    a.label("b_ln")
    a("""s_lshr_b32 s3, s2, 4
         s_lshl_b32 s3, s3, 3
         s_and_b32 s53, s2, 7
         s_add_u32 s3, s3, s53""")
    PHASE[0] = "ln"
    C.ln(a, 3, "ln")
    a("s_cmp_lg_u32 s26, 4\ns_cbranch_scc1 b_ln2")
    C.get_tag(a, "b_tag0")
    a(f"s_lshl_b32 s44, s3, 7\ns_add_u32 s44, s44, {C.FL_H}")
    a.label("b_ln2")
    a("s_waitcnt vmcnt(0)\ns_barrier\ns_cmp_lg_u32 s26, 4\ns_cbranch_scc1 b_roles")
    hp(a, "hb", 1)
    C.publish(a, 44)
    a("s_branch b_help")
    a.label("b_noln")
    a("s_waitcnt lgkmcnt(0)")
    C.srd(a, 36, C.P_WS, C.WS_BYTES)
    a("s_cmp_lt_u32 s26, 4\ns_cbranch_scc1 b_g1\ns_cmp_ge_u32 s26, 6\ns_cbranch_scc1 exit0")
    C.get_tag(a, "b_tag1")
    a.label("b_roles")
    a("""s_cmp_ge_u32 s26, 6
         s_cbranch_scc1 exit0
         s_cmp_eq_u32 s26, 5
         s_cbranch_scc1 b_pref
         s_cmp_eq_u32 s26, 4
         s_cbranch_scc1 b_help""")
    a.label("b_g1")
    C.g1_ids(a, 2)
    a("s_cbranch_scc1 b_fin")
    PHASE[0] = "g1"
    C.g1(a, "g1", go=bar)
    a("s_waitcnt vmcnt(0)\ns_barrier")
    a.label("b_fin")
    C.fin_ids(a, 2)
    PHASE[0] = "fin"
    C.fin(a, "fin", go=bar, go2=lambda a: a("s_barrier"))
    a("s_branch b_exit")
    a.label("b_pref")
    C.srd(a, 28, C.P_W1, C.S * C.F * 2)
    a(f"""s_bfe_u32 s53, s2, 0x20001
          s_mul_i32 s53, s53, 896
          s_lshr_b32 s54, s2, 3
          s_mul_i32 s54, s54, {8 * 3584}
          s_add_u32 s49, s53, s54
          v_mul_u32_u24 v2, 9363, v1
          v_lshrrev_b32 v2, 16, v2
          v_mul_u32_u24 v3, 7, v2
          v_sub_u32 v3, v1, v3
          v_mul_u32_u24 v2, 3584, v2
          v_lshl_add_u32 v2, v3, 7, v2
          s_mov_b32 exec_hi, 0xffffff
          buffer_load_dword v4, v2, s[28:31], s49 offen
          s_add_u32 s49, s49, {256 * 3584}
          s_waitcnt vmcnt(0)
          buffer_load_dword v4, v2, s[28:31], s49 offen
          s_add_u32 s49, s49, {256 * 3584}""")
    C.g1_ids(a, 2)
    a("s_cbranch_scc1 b_pref1\ns_barrier")
    a.label("b_pref1")
    for i in range(6):
        a(f"s_waitcnt vmcnt(0)\nbuffer_load_dword v4, v2, s[28:31], s49 offen\ns_add_u32 s49, s49, {256 * 3584}")
    a("s_endpgm")
    a.label("b_help")
    a("s_setprio 3")
    C.g1_ids(a, 2)
    a("s_cbranch_scc1 b_h2")
    t = C.touch_rows(a, C.HT, 51, 52, 7, 256)
    a(f"v_lshlrev_b32 v2, 7, v1\ns_mov_b32 s44, {C.FL_H}")
    C.wait_flags(a, "b_wh0", 2, 44)
    a(f"s_mov_b32 s44, {C.FL_H + 8192}")
    C.wait_flags(a, "b_wh1", 2, 44)
    hp(a, "hb", 2)
    a("s_barrier")
    for x in t:
        a(x + "\ns_waitcnt vmcnt(1)")
    a(f"""s_lshl_b32 s44, s51, 5
          s_add_u32 s44, s44, s50
          s_lshl_b32 s44, s44, 7
          s_add_u32 s44, s44, {C.FL_U}""")
    hp(a, "hb", 3)
    a("s_barrier\ns_barrier")
    hp(a, "hb", 4)
    C.publish(a, 44)
    a.label("b_h2")
    C.fin_ids(a, 2)
    a("s_and_b32 s52, s50, 7")
    t = C.touch_rows(a, C.UF, 51, 52, 8, 224)
    a(f"""v_lshlrev_b32 v2, 7, v1
          s_lshl_b32 s44, s51, 12
          s_add_u32 s44, s44, {C.FL_U}
          s_mov_b64 exec, 0xfffffff""")
    C.wait_flags(a, "b_wu", 2, 44)
    hp(a, "hb", 5)
    a("s_barrier")
    for x in t:
        a(x + "\ns_waitcnt vmcnt(1)")
    a(f"""s_lshr_b32 s44, s50, 1
          s_lshl_b32 s44, s44, 11
          s_add_u32 s44, s44, {C.FL_O}
          v_lshrrev_b32 v3, 3, v1
          v_lshlrev_b32 v3, 15, v3
          v_and_b32 v4, 7, v1
          v_lshl_add_u32 v3, v4, 7, v3
          s_and_b32 s53, s51, 3
          s_lshl_b32 s53, s53, 19
          s_lshl_b32 s54, s50, 10
          s_add_u32 s53, s53, s54
          s_add_u32 s53, s53, {C.OF}""")
    hp(a, "hb", 6)
    a("s_mov_b64 exec, 0xffff")
    C.wait_flags(a, "b_wo", 2, 44)
    hp(a, "hb", 7)
    a(f"""buffer_load_dword v5, v3, s[36:39], s53 offen {C.SC}
          s_add_u32 s53, s53, {8 * 32768}
          buffer_load_dword v5, v3, s[36:39], s53 offen {C.SC}
          s_barrier""")
    a.label("b_exit")


def code_touch(a):
    a("""s_getpc_b64 s[26:27]""")
    a.label("k_pc")
    a(f"""s_sub_u32 s26, s26, k_pc-{NAME}_kernel
          s_subb_u32 s27, s27, 0
          s_lshr_b32 s3, s2, 3
          s_lshl_b32 s3, s3, 10
          s_add_u32 s26, s26, s3
          s_addc_u32 s27, s27, 0
          v_subrev_u32 v2, 504, v0
          v_lshlrev_b32 v2, 7, v2
          v_mov_b32 v3, s27
          v_add_co_u32 v2, vcc, s26, v2
          v_addc_co_u32 v3, vcc, 0, v3, vcc
          s_cmp_lt_u32 s3, k_end-{NAME}_kernel-1023
          s_cselect_b64 s[26:27], -1, 0
          v_cmp_le_u32 vcc, 504, v0
          s_and_b64 vcc, vcc, s[26:27]
          s_and_saveexec_b64 s[26:27], vcc
          s_cbranch_execz k_notouch
          global_load_dword v127, v[2:3], off""")
    a.label("k_notouch")
    a("s_mov_b64 exec, s[26:27]")


def kp(a):
    a("s_cmp_ge_u32 s2, 512\ns_cbranch_scc1 exit0")
    stamp_begin(a)
    C.load_args(a)
    if "nocode" not in OPT:
        code_touch(a)
    a("s_cmp_ge_u32 s2, 256\ns_cbranch_scc1 role_a")
    if "qkvonly" in OPT:
        a("s_waitcnt lgkmcnt(0)")
        SLOTS["b"] = {}
    else:
        role_b(a)
    stamp_end(a, 0)
    a.label("exit0")
    a("s_endpgm")
    a.label("role_a")
    a("s_sub_u32 s3, s2, 256")
    role_a(a)
    stamp_end(a, 0)
    a("s_endpgm")
    a(".p2align 10")
    a.label("k_end")


def build(path):
    head = [ln for ln in open(REF).read().split("\n") if ln.startswith(";") and "@launch" not in ln]
    out = "\n".join(head) + "\n; @launch grid=(512,1,1) block=(512,1,1) lds=81920\n"
    out += '.amdgcn_target "amdgcn-amd-amdhsa--gfx950"\n.text\n'
    t, kd = kernel(NAME + "_kernel", kp)
    out += t + '.section .rodata,"a"\n' + kd
    open(path, "w").write(out)
    if STAMP:
        import json
        json.dump({r: [f"{p}{i}" for (p, i) in d] for r, d in SLOTS.items()}, open(path + ".json", "w"))


if __name__ == "__main__":
    STAMP = "--stamp" in sys.argv
    OPT = {x[2:] for x in sys.argv if x.startswith("--")}
    C.OPT = OPT
    if "ring3" in OPT:
        C.set_ring(3)
    if "qkvonly" in OPT:
        WANT["qkv"] = tuple(range(13))
    sys.argv = [x for x in sys.argv if not x.startswith("--")]
    build(sys.argv[1] if len(sys.argv) > 1 else f"cdna_kernels/{NAME}.s")
```

```python
import sys
from asmlib import Asm
import comps as C

NAME = "parallel_sum__softmax_full_mha__mixer_token_mlp__prompt"
REF = f"cdna_kernels/{NAME}.s.ref"


def kernel(name, body, nv=128):
    a = Asm()
    body(a)
    lines = a.finish()
    txt = f".globl {name}\n.p2align 8\n.type {name},@function\n{name}:\n"
    txt += "\n".join(("" if ln.endswith(":") else "    ") + ln for ln in lines) + "\n"
    kd = f""".p2align 6
.amdhsa_kernel {name}
  .amdhsa_next_free_vgpr {nv}
  .amdhsa_next_free_sgpr {100 if STAMP or 'dbgp' in OPT else 72}
  .amdhsa_accum_offset {nv}
  .amdhsa_group_segment_fixed_size 0
  .amdhsa_kernarg_size 88
  .amdhsa_user_sgpr_count 2
  .amdhsa_user_sgpr_kernarg_segment_ptr 1
  .amdhsa_system_sgpr_workgroup_id_x 1
.end_amdhsa_kernel
"""
    return txt, kd


STAMP = False
TS = 14 << 20


PHASE = [""]
SAVE = []
OPT = set()
SLOTS = {}
WANT = {"qkv": (0, 1, 2, 4, 7, 8, 9), "att": (0, 1, 2, 4, 6, 8, 10, 11), "ln": (0, 1, 2, 3), "g1": (0, 1, 3, 5, 7, 10, 11),
        "fin": (0, 1, 3, 5, 7, 8, 9, 10, 11), "ha": tuple(range(8)), "hb": tuple(range(12))}


def stamp_begin(a):
    if "dbgp" in OPT:
        for i in range(16):
            a(f"s_mov_b32 s{72 + i}, 0")
    if STAMP:
        a("s_memrealtime s[64:65]\ns_memtime s[66:67]")
        for i in range(28):
            a(f"s_mov_b32 s{72 + i}, 0")


DBGP = {("qkv", 0): 1, ("qkv", 1): 2, ("qkv", 4): 3, ("qkv", 9): 4, ("att", 0): 5, ("att", 2): 6, ("att", 10): 7, ("ln", 1): 8, ("ln", 3): 9,
        ("g1", 0): 10, ("g1", 10): 11, ("fin", 0): 12, ("fin", 8): 13, ("fin", 11): 14, ("end", 0): 15}


def dbg_probe(a, key):
    if key in DBGP:
        a(f"""s_memrealtime s[70:71]
              s_mov_b32 s64, s22
              s_mov_b32 s65, s23
              s_mov_b32 s66, 256
              s_mov_b32 s67, 0x20000
              s_waitcnt lgkmcnt(0)
              v_mov_b32 v124, s70
              v_mov_b32 v125, {4 * DBGP[key]}
              s_mov_b64 s[68:69], exec
              s_mov_b64 exec, 1
              buffer_atomic_umax v124, v125, s[64:67], 0 offen
              s_mov_b64 exec, s[68:69]
              s_waitcnt vmcnt(63)""")


def probe(a, i):
    ph = PHASE[0]
    if "dbgp" in OPT:
        SAVE.append((ph, i))
        if (ph, i) in DBGP:
            a(f"s_memrealtime s[70:71]\ns_waitcnt lgkmcnt(0)\ns_mov_b32 s{72 + DBGP[(ph, i)]}, s70")
        return
    if STAMP and i in WANT[ph]:
        role = "a" if ph in ("qkv", "att", "ha") else "b"
        d = SLOTS.setdefault(role, {})
        slot = d.setdefault((ph, i), len(d))
        assert slot < 28
        a(f"s_memrealtime s[70:71]\ns_waitcnt lgkmcnt(0)\ns_mov_b32 s{72 + slot}, s70")


C.probe = probe


def hp(a, ph, i):
    old = PHASE[0]
    PHASE[0] = ph
    probe(a, i)
    PHASE[0] = old


def stamp_end(a, kid):
    if "dbgp" in OPT:
        a("s_waitcnt vmcnt(0)\ns_memrealtime s[70:71]\ns_waitcnt lgkmcnt(0)\ns_mov_b32 s87, s70")
        C.srd(a, 64, C.P_DBG, 256)
        a("v_lshlrev_b32 v2, 2, v1\nv_mov_b32 v3, 0")
        for i in range(1, 16):
            a(f"v_writelane_b32 v3, s{72 + i}, {i}")
        a("s_mov_b64 exec, 0xfffe\nbuffer_atomic_umax v3, v2, s[64:67], 0 offen")
    if STAMP:
        a(f"""s_waitcnt vmcnt(0) lgkmcnt(0)
              s_memrealtime s[68:69]
              s_memtime s[70:71]
              s_waitcnt lgkmcnt(0)
              s_sub_u32 s70, s70, s66""")
        C.srd(a, 36, C.P_WS, C.WS_BYTES)
        a(f"""s_lshl_b32 s53, s2, 10
              s_add_u32 s53, s53, {TS}
              v_lshrrev_b32 v2, 6, v0
              v_lshlrev_b32 v2, 7, v2
              v_mov_b32 v4, s64
              v_mov_b32 v5, s68
              v_mov_b32 v6, s70
              v_mov_b32 v7, 1""")
        for i in range(28):
            a(f"v_mov_b32 v{8 + i}, s{72 + i}")
        for i in range(8):
            a(f"buffer_store_dwordx4 v[{4 + 4 * i}:{7 + 4 * i}], v2, s[36:39], s53 offen offset:{16 * i}")


def role_a(a):
    C.lane_wave(a)
    C.qkv_ids(a, 3)
    a("s_setprio 1\ns_cmp_ge_u32 s26, 4\ns_cbranch_scc1 a_help")
    PHASE[0] = "qkv"
    C.qkv(a, 3, "qkv", "a_pub")
    a.label("a_help")
    dma_w = C.qkv_wload(a)
    dma_w(0); dma_w(1)
    nt = 0
    if "notouch" not in OPT:
        C.qkv_touch(a, 3)
        nt = 1
    C.srd(a, 36, C.P_WS, C.WS_BYTES)
    for b in range(C.QKV_BARRIERS):
        if b < 7:
            a(f"s_waitcnt vmcnt({3 + nt if b < 2 else 3 if b < 6 else 0})")
        a("s_barrier")
        if b + 2 < 7:
            dma_w(b + 2)
    if "qkvonly" in OPT:
        a.label("a_pub")
        return
    a("s_cmp_lg_u32 s26, 4\ns_cbranch_scc1 a_pub")
    C.get_tag(a, "a_tag")
    hp(a, "ha", 0)
    a.label("a_pub")
    a(f"""s_lshl_b32 s53, s48, 4
          s_add_u32 s53, s53, s27
          s_lshl_b32 s53, s53, 7
          s_add_u32 s44, s53, {C.FL_Q}""")
    C.att_ids(a, 3)

    def hook(a):
        a("""s_waitcnt vmcnt(0)
             s_barrier
             s_cmp_lg_u32 s26, 4
             s_cbranch_scc1 a_go""")
        hp(a, "ha", 1)
        C.publish(a, 44)
        a(f"""v_lshrrev_b32 v3, 4, v1
              v_min_u32 v3, 2, v3
              v_sub_u32 v3, 2, v3
              v_lshlrev_b32 v3, 4, v3
              v_add_u32 v3, s27, v3
              v_mul_u32_u24 v3, 0x5556, v3
              v_lshrrev_b32 v3, 16, v3
              v_and_b32 v2, 15, v1
              s_mov_b32 exec_lo, 0
              v_mov_b32 v2, s47
              s_mov_b32 exec_lo, -1
              v_lshl_add_u32 v2, v3, 4, v2
              v_lshlrev_b32 v2, 7, v2
              s_mov_b32 s44, {C.FL_Q}
              s_mov_b32 exec_hi, 1""")
        C.wait_flags(a, "a_wq", 2, 44)
        a(f"v_readfirstlane_b32 s46, v{C.VN}")
        hp(a, "ha", 2)
        a.label("a_go")
        a("s_barrier")

    C.att.prologue_hook = hook
    PHASE[0] = "att"
    C.att(a, "att", "a_end", idreg=3)
    a.label("a_end")
    a(f"""s_waitcnt vmcnt(0)
          s_barrier
          s_cmp_lg_u32 s26, 4
          s_cbranch_scc1 a_exit
          s_lshl_b32 s53, s47, 4
          s_add_u32 s53, s53, s27
          s_lshl_b32 s53, s53, 7
          s_add_u32 s44, s53, {C.FL_O}
          v_mov_b32 v{C.VN}, s46""")
    C.publish(a, 44)
    a.label("a_exit")


def role_b(a):
    bar = lambda a: a("s_setprio 0\ns_barrier")
    C.lane_wave(a)
    a("""s_setprio 2
         s_bitcmp1_b32 s2, 3
         s_cbranch_scc1 b_noln
         s_cmp_lg_u32 s2, 0
         s_cbranch_scc1 b_ln
         s_cmp_lg_u32 s26, 4
         s_cbranch_scc1 b_ln
         s_waitcnt lgkmcnt(0)""")
    C.put_tag(a)
    a.label("b_ln")
    a("""s_lshr_b32 s3, s2, 4
         s_lshl_b32 s3, s3, 3
         s_and_b32 s53, s2, 7
         s_add_u32 s3, s3, s53""")
    PHASE[0] = "ln"
    C.ln(a, 3, "ln")
    a("s_cmp_lg_u32 s26, 4\ns_cbranch_scc1 b_ln2")
    C.get_tag(a, "b_tag0")
    a(f"s_lshl_b32 s44, s3, 7\ns_add_u32 s44, s44, {C.FL_H}")
    a.label("b_ln2")
    a("s_waitcnt vmcnt(0)\ns_barrier\ns_cmp_lg_u32 s26, 4\ns_cbranch_scc1 b_roles")
    hp(a, "hb", 1)
    C.publish(a, 44)
    a("s_branch b_help")
    a.label("b_noln")
    a("s_waitcnt lgkmcnt(0)")
    C.srd(a, 36, C.P_WS, C.WS_BYTES)
    a("s_cmp_lt_u32 s26, 4\ns_cbranch_scc1 b_g1\ns_cmp_ge_u32 s26, 6\ns_cbranch_scc1 exit0")
    C.get_tag(a, "b_tag1")
    a.label("b_roles")
    a("""s_cmp_ge_u32 s26, 6
         s_cbranch_scc1 exit0
         s_cmp_eq_u32 s26, 5
         s_cbranch_scc1 b_pref
         s_cmp_eq_u32 s26, 4
         s_cbranch_scc1 b_help""")
    a.label("b_g1")
    C.g1_ids(a, 2)
    a("s_cbranch_scc1 b_fin")
    PHASE[0] = "g1"
    C.g1(a, "g1", go=bar)
    a("s_waitcnt vmcnt(0)\ns_barrier")
    a.label("b_fin")
    C.fin_ids(a, 2)
    PHASE[0] = "fin"
    C.fin(a, "fin", go=bar, go2=lambda a: a("s_barrier"))
    a("s_branch b_exit")
    a.label("b_pref")
    C.srd(a, 28, C.P_W1, C.S * C.F * 2)
    a(f"""s_bfe_u32 s53, s2, 0x20001
          s_mul_i32 s53, s53, 896
          s_lshr_b32 s54, s2, 3
          s_mul_i32 s54, s54, {8 * 3584}
          s_add_u32 s49, s53, s54
          v_mul_u32_u24 v2, 9363, v1
          v_lshrrev_b32 v2, 16, v2
          v_mul_u32_u24 v3, 7, v2
          v_sub_u32 v3, v1, v3
          v_mul_u32_u24 v2, 3584, v2
          v_lshl_add_u32 v2, v3, 7, v2
          s_mov_b32 exec_hi, 0xffffff
          buffer_load_dword v4, v2, s[28:31], s49 offen
          s_add_u32 s49, s49, {256 * 3584}
          s_waitcnt vmcnt(0)
          buffer_load_dword v4, v2, s[28:31], s49 offen
          s_add_u32 s49, s49, {256 * 3584}""")
    C.g1_ids(a, 2)
    a("s_cbranch_scc1 b_pref1\ns_barrier")
    a.label("b_pref1")
    for i in range(6):
        a(f"s_waitcnt vmcnt(0)\nbuffer_load_dword v4, v2, s[28:31], s49 offen\ns_add_u32 s49, s49, {256 * 3584}")
    a("s_endpgm")
    a.label("b_help")
    a("s_setprio 3")
    C.g1_ids(a, 2)
    a("s_cbranch_scc1 b_h2")
    t = C.touch_rows(a, C.HT, 51, 52, 7, 256)
    a(f"v_lshlrev_b32 v2, 7, v1\ns_mov_b32 s44, {C.FL_H}")
    C.wait_flags(a, "b_wh0", 2, 44)
    a(f"s_mov_b32 s44, {C.FL_H + 8192}")
    C.wait_flags(a, "b_wh1", 2, 44)
    hp(a, "hb", 2)
    a("s_barrier")
    for x in t:
        a(x + "\ns_waitcnt vmcnt(1)")
    a(f"""s_lshl_b32 s44, s51, 5
          s_add_u32 s44, s44, s50
          s_lshl_b32 s44, s44, 7
          s_add_u32 s44, s44, {C.FL_U}""")
    hp(a, "hb", 3)
    a("s_barrier\ns_barrier")
    hp(a, "hb", 4)
    C.publish(a, 44)
    a.label("b_h2")
    C.fin_ids(a, 2)
    a("s_and_b32 s52, s50, 7")
    t = C.touch_rows(a, C.UF, 51, 52, 8, 224)
    a(f"""v_lshlrev_b32 v2, 7, v1
          s_lshl_b32 s44, s51, 12
          s_add_u32 s44, s44, {C.FL_U}
          s_mov_b64 exec, 0xfffffff""")
    C.wait_flags(a, "b_wu", 2, 44)
    hp(a, "hb", 5)
    a("s_barrier")
    for x in t:
        a(x + "\ns_waitcnt vmcnt(1)")
    a(f"""s_lshr_b32 s44, s50, 1
          s_lshl_b32 s44, s44, 11
          s_add_u32 s44, s44, {C.FL_O}
          v_lshrrev_b32 v3, 3, v1
          v_lshlrev_b32 v3, 15, v3
          v_and_b32 v4, 7, v1
          v_lshl_add_u32 v3, v4, 7, v3
          s_and_b32 s53, s51, 3
          s_lshl_b32 s53, s53, 19
          s_lshl_b32 s54, s50, 10
          s_add_u32 s53, s53, s54
          s_add_u32 s53, s53, {C.OF}""")
    hp(a, "hb", 6)
    a("s_mov_b64 exec, 0xffff")
    C.wait_flags(a, "b_wo", 2, 44)
    hp(a, "hb", 7)
    a(f"""buffer_load_dword v5, v3, s[36:39], s53 offen {C.SC}
          s_add_u32 s53, s53, {8 * 32768}
          buffer_load_dword v5, v3, s[36:39], s53 offen {C.SC}
          s_barrier""")
    a.label("b_exit")


def code_touch(a):
    a("""s_getpc_b64 s[26:27]""")
    a.label("k_pc")
    a(f"""s_sub_u32 s26, s26, k_pc-{NAME}_kernel
          s_subb_u32 s27, s27, 0
          s_lshr_b32 s3, s2, 3
          s_lshl_b32 s3, s3, 10
          s_add_u32 s26, s26, s3
          s_addc_u32 s27, s27, 0
          v_subrev_u32 v2, 504, v0
          v_lshlrev_b32 v2, 7, v2
          v_mov_b32 v3, s27
          v_add_co_u32 v2, vcc, s26, v2
          v_addc_co_u32 v3, vcc, 0, v3, vcc
          s_cmp_lt_u32 s3, k_end-{NAME}_kernel-1023
          s_cselect_b64 s[26:27], -1, 0
          v_cmp_le_u32 vcc, 504, v0
          s_and_b64 vcc, vcc, s[26:27]
          s_and_saveexec_b64 s[26:27], vcc
          s_cbranch_execz k_notouch
          global_load_dword v127, v[2:3], off""")
    a.label("k_notouch")
    a("s_mov_b64 exec, s[26:27]")


def kp(a):
    a("s_cmp_ge_u32 s2, 512\ns_cbranch_scc1 exit0")
    stamp_begin(a)
    if "fixedlen" in OPT:
        a("s_memrealtime s[68:69]")
    C.load_args(a)
    lat = [x for x in OPT if x.startswith("lat")]
    if lat:
        ptr, off = {"latA": (None, 0), "latB": (C.P_W2, 3 << 20), "latC": (C.P_X, 1 << 20), "latD": (C.P_WS, 13 << 20), "latE": (C.P_W1, 5 << 20), "latF": (C.P_WQKV, 1 << 19)}[lat[0]]
        a("s_waitcnt lgkmcnt(0)\ns_memrealtime s[66:67]\ns_waitcnt lgkmcnt(0)\ns_sub_u32 s65, s66, s68")
        if ptr:
            C.srd(a, 28, ptr, 16 << 20 if ptr == C.P_WS else (off + 4096))
            a(f"""s_cmp_lg_u32 s2, 0
                  s_cbranch_scc1 lat_skip
                  v_mov_b32 v2, {off}
                  buffer_load_dword v3, v2, s[28:31], 0 offen
                  s_waitcnt vmcnt(0)
                  s_memrealtime s[62:63]
                  s_waitcnt lgkmcnt(0)
                  s_sub_u32 s65, s62, s66""")
            a.label("lat_skip")
        a("s_mul_i32 s65, s65, 10\ns_add_u32 s65, s65, 4000")
    if "nocode" not in OPT:
        code_touch(a)
    a("s_cmp_ge_u32 s2, 256\ns_cbranch_scc1 role_a")
    if "qkvonly" in OPT:
        a("s_waitcnt lgkmcnt(0)")
        SLOTS["b"] = {}
    else:
        role_b(a)
    if "fixedlen" in OPT:
        a("s_cmp_lg_u32 s2, 0\ns_cbranch_scc1 exit0")
        a.label("fx_spin")
        a("""s_sleep 4
             s_memrealtime s[70:71]
             s_waitcnt lgkmcnt(0)
             s_sub_u32 s70, s70, s68
             s_cmp_lt_u32 s70, s65
             s_cbranch_scc1 fx_spin""")
    stamp_end(a, 0)
    a.label("exit0")
    a("s_endpgm")
    a.label("role_a")
    a("s_sub_u32 s3, s2, 256")
    role_a(a)
    stamp_end(a, 0)
    a("s_endpgm")
    a(".p2align 10")
    a.label("k_end")


def build(path):
    head = [ln for ln in open(REF).read().split("\n") if ln.startswith(";") and "@launch" not in ln]
    out = "\n".join(head) + "\n; @launch grid=(512,1,1) block=(512,1,1) lds=81920\n"
    out += '.amdgcn_target "amdgcn-amd-amdhsa--gfx950"\n.text\n'
    t, kd = kernel(NAME + "_kernel", kp)
    out += t + '.section .rodata,"a"\n' + kd
    open(path, "w").write(out)
    if STAMP:
        import json
        json.dump({r: [f"{p}{i}" for (p, i) in d] for r, d in SLOTS.items()}, open(path + ".json", "w"))


if __name__ == "__main__":
    STAMP = "--stamp" in sys.argv
    OPT = {x[2:] for x in sys.argv if x.startswith("--")}
    C.OPT = OPT
    if "ring3" in OPT:
        C.set_ring(3)
    if "qkvonly" in OPT:
        WANT["qkv"] = tuple(range(13))
    sys.argv = [x for x in sys.argv if not x.startswith("--")]
    build(sys.argv[1] if len(sys.argv) > 1 else f"cdna_kernels/{NAME}.s")
```
